```python
import torch

def _softmax(x, axis=-1):
    return torch.softmax(x, dim=axis)

def _gelu(x):
    return torch.nn.functional.gelu(x, approximate='tanh')

def _silu(x):
    return torch.nn.functional.silu(x)

def _sigmoid(x):
    return torch.sigmoid(x)

def _layernorm(x, axis=-1, eps=1e-05):
    m = x.mean(dim=axis, keepdim=True)
    v = x.var(dim=axis, keepdim=True, unbiased=False)
    return (x - m) / torch.sqrt(v + eps)

def _scatter_add(tgt, idx, src, axis=0):
    return tgt.clone().index_add_(axis, idx, src)

def _segment_sum(src, seg, n):
    out = torch.zeros((n,) + src.shape[1:], dtype=src.dtype)
    return out.index_add_(0, seg, src)

def _pad(x, pw):
    flat = tuple((v for pair in reversed(pw) for v in pair))
    return torch.nn.functional.pad(x, flat)
kernel_name = 'interleave_layers__memory_aug_recurrent_mem_tr__mixer_channel_mlp__prompt'

def setup_inputs():

    _w = lambda a: (lambda t: t.to(torch.bfloat16) if t.is_floating_point() else t)(torch.as_tensor(a))

    def _A_setup():
        B, S, Dm = (1, 2048, 1024)
        H, Dh = (32, 128)
        M, seg = (8, 32)
        seg = min(seg, S)
        S = S // seg * seg
        return {'x': _w((lambda *s: torch.randn(*s, dtype=torch.bfloat16) * 0.05)(B, S, Dm)), 'mem0': _w((lambda *s: torch.randn(*s, dtype=torch.bfloat16) * 0.8)(B, M, Dm)), 'Wq': _w((lambda *s: torch.randn(*s, dtype=torch.bfloat16) * 1.6)(Dm, H, Dh) * Dm ** (-0.5)), 'Wk': _w((lambda *s: torch.randn(*s, dtype=torch.bfloat16) * 1.6)(Dm, H, Dh) * Dm ** (-0.5)), 'Wv': _w((lambda *s: torch.randn(*s, dtype=torch.bfloat16) * 0.8)(Dm, H, Dh) * Dm ** (-0.5)), 'Wo': _w((lambda *s: torch.randn(*s, dtype=torch.bfloat16) * 0.8)(H, Dh, Dm) * (H * Dh) ** (-0.5)), 'seg_len': seg}
    _A_in = _A_setup()

    def _B_setup():
        B, S, D, F = (1, 2048, 1024, 3584)
        return {'x': _w((lambda *s: torch.randn(*s, dtype=torch.bfloat16) * 0.05)(B, S, D)), 'w1': _w((lambda *s: torch.randn(*s, dtype=torch.bfloat16) * 3.2)(D, F) * D ** (-0.5)), 'b1': _w((lambda *s: torch.randn(*s, dtype=torch.bfloat16) * 0.8)(F)), 'w2': _w((lambda *s: torch.randn(*s, dtype=torch.bfloat16) * 0.1)(F, D) * F ** (-0.5)), 'b2': _w((lambda *s: torch.randn(*s, dtype=torch.bfloat16) * 0.1)(D))}
    _B_in = _B_setup()
    return {'A_x': _A_in['x'], 'A_mem0': _A_in['mem0'], 'A_Wq': _A_in['Wq'], 'A_Wk': _A_in['Wk'], 'A_Wv': _A_in['Wv'], 'A_Wo': _A_in['Wo'], 'A_seg_len': _A_in['seg_len'], 'B_x': _B_in['x'], 'B_w1': _B_in['w1'], 'B_b1': _B_in['b1'], 'B_w2': _B_in['w2'], 'B_b2': _B_in['b2']}

def reference(A_x, A_mem0, A_Wq, A_Wk, A_Wv, A_Wo, A_seg_len, B_x, B_w1, B_b1, B_w2, B_b2):

    def _A_ref(x, mem0, Wq, Wk, Wv, Wo, seg_len):
        B, S, Dm = x.shape
        H, Dh = (Wq.shape[1], Wq.shape[2])
        M = mem0.shape[1]
        scale = Dh ** (-0.5)
        n_seg = S // seg_len
        L = M + seg_len
        idx = torch.arange(L)
        mask = (idx[:, None] < M) | (idx[:, None] >= idx[None, :])
        mem = mem0
        outs = []
        for s in range(n_seg):
            xs = x[:, s * seg_len:(s + 1) * seg_len, :].clone()
            h = torch.concatenate([mem, xs], axis=1)
            q = torch.einsum('btd,dhe->bhte', h, Wq)
            k = torch.einsum('btd,dhe->bhte', h, Wk)
            v = torch.einsum('btd,dhe->bhte', h, Wv)
            scores = torch.einsum('bhqe,bhke->bhqk', q, k) * scale
            scores = torch.where(mask[None, None], scores, -1000000000.0)
            p = _softmax(scores, axis=-1)
            o = torch.einsum('bhqk,bhke->bhqe', p, v)
            o = torch.einsum('bhte,hed->btd', o, Wo)
            mem = o[:, :M, :].clone()
            outs.append(o[:, M:, :])
        return torch.concatenate(outs, axis=1)

    def _B_ref(x, w1, b1, w2, b2):
        y = _layernorm(x, axis=-1)
        h = _gelu(torch.einsum('bsd,df->bsf', y, w1) + b1)
        return torch.einsum('bsf,fd->bsd', h, w2) + b2
    x = A_x
    x = x + _A_ref(_layernorm(x, axis=-1), A_mem0, A_Wq, A_Wk, A_Wv, A_Wo, A_seg_len)
    x = x + _B_ref(_layernorm(x, axis=-1), B_w1, B_b1, B_w2, B_b2)
    x = x + _A_ref(_layernorm(x, axis=-1), A_mem0, A_Wq, A_Wk, A_Wv, A_Wo, A_seg_len)
    x = x + _B_ref(_layernorm(x, axis=-1), B_w1, B_b1, B_w2, B_b2)
    return x
```

```python
class Asm:
    def __init__(self):
        self.lines = []
        self.uid = 0
    def __call__(self, s=""):
        import re
        for l in s.split("\n"):
            m = re.search(r"offset:(\d+)", l)
            if m:
                v = int(m.group(1))
                if l.strip().startswith("buffer_"): assert v < 4096, l
                elif l.strip().startswith("ds_"): assert v < 65536, l
                elif l.strip().startswith("global_"): assert v < 4096, l
            self.lines.append("    " + l.strip() if l.strip() and not l.strip().endswith(":") else l.strip())
    def label(self, name):
        self.lines.append(name + ":")
    def new(self, base="L"):
        self.uid += 1
        return f".{base}_{self.uid}"
    def text(self):
        return "\n".join(self.lines) + "\n"

def kernel_begin(a, name):
    a.lines.append(".text")
    a.lines.append(f".globl {name}")
    a.lines.append(".p2align 8")
    a.lines.append(f".type {name},@function")
    a.lines.append(f"{name}:")

def kernel_end(a, name, vgpr, sgpr=102, accum=None):
    if accum is None:
        accum = (vgpr + 3) // 4 * 4
    a.lines.append("    s_endpgm")
    a.lines.append('.section .rodata,"a"')
    a.lines.append(".p2align 6")
    a.lines.append(f".amdhsa_kernel {name}")
    a.lines.append(f"  .amdhsa_next_free_vgpr {vgpr}")
    a.lines.append(f"  .amdhsa_next_free_sgpr {sgpr}")
    a.lines.append(f"  .amdhsa_accum_offset {accum}")
    a.lines.append("  .amdhsa_group_segment_fixed_size 0")
    a.lines.append("  .amdhsa_kernarg_size 120")
    a.lines.append("  .amdhsa_user_sgpr_count 2")
    a.lines.append("  .amdhsa_user_sgpr_kernarg_segment_ptr 1")
    a.lines.append("  .amdhsa_system_sgpr_workgroup_id_x 1")
    a.lines.append(".end_amdhsa_kernel")

KA = dict(A_x=0, A_mem0=8, Wq=16, Wk=24, Wv=32, Wo=40, seg=48, B_x=56, w1=64, b1=72, w2=80, b2=88, out=96, dbg=104, ws=112)

def srd(a, d, base_lo, base_hi, nbytes):
    a(f"s_mov_b32 s{d}, {base_lo}")
    a(f"s_and_b32 s{d+1}, {base_hi}, 0xffff")
    a(f"s_mov_b32 s{d+2}, {nbytes:#x}")
    a(f"s_mov_b32 s{d+3}, 0x00020000")
```

```python
from asmlib import *
from k_chain import f2h, xlane_reduce, KV_LD

def gen_attn(a, name, WS):
    WL = 96 * KV_LD
    kernel_begin(a, name)
    a("s_cmp_ge_u32 s2, 512")
    a(f"s_cbranch_scc1 .{name}_done")
    a(f"s_load_dwordx2 s[4:5], s[0:1], {KA['ws']}")
    a("v_and_b32 v1, 63, v0")
    a("v_lshrrev_b32 v2, 6, v0")
    a("v_and_b32 v3, 15, v1")
    a("v_lshrrev_b32 v4, 4, v1")
    a("s_nop 0")
    a("v_readfirstlane_b32 s58, v2")
    a("s_lshr_b32 s59, s2, 3")
    a("s_and_b32 s60, s2, 7")
    a("s_lshl_b32 s60, s60, 2")
    a("s_add_u32 s60, s60, s58")
    a("s_waitcnt lgkmcnt(0)")
    a(f"s_add_u32 s6, s4, {WS['QKV']:#x}")
    a("s_addc_u32 s7, s5, 0")
    srd(a, 12, "s6", "s7", 2048 * 24576)
    a(f"s_add_u32 s6, s4, {WS['KVM']:#x}")
    a("s_addc_u32 s7, s5, 0")
    srd(a, 16, "s6", "s7", 64 * 2 * 8 * 8192)
    a(f"s_add_u32 s6, s4, {WS['O']:#x}")
    a("s_addc_u32 s7, s5, 0")
    srd(a, 20, "s6", "s7", 2048 * 8192)
    a(f"s_mul_i32 s61, s58, {WL}")
    a("v_lshlrev_b32 v5, 13, v4")
    a("v_lshl_add_u32 v5, v3, 4, v5")
    a("s_mov_b32 s3, 24576")
    a("v_mul_lo_u32 v6, v4, s3")
    a("v_lshl_add_u32 v6, v3, 4, v6")
    a(f"v_mul_u32_u24 v7, {KV_LD}, v4")
    a("v_lshl_add_u32 v7, v3, 4, v7")
    a("v_add_u32 v7, s61, v7")
    a("s_lshl_b32 s62, s59, 17")
    a("s_lshl_b32 s63, s60, 8")
    a("s_add_u32 s62, s62, s63")
    a(f"s_mul_i32 s64, s59, {32*24576}")
    a("s_add_u32 s64, s64, s63")
    for t in range(2):
        dst = 64 + 40 * t
        for i in range(2):
            a(f"s_add_u32 s3, s62, {t*65536 + i*4*8192}")
            a(f"buffer_load_dwordx4 v[{dst+4*i}:{dst+4*i+3}], v5, s[16:19], s3 offen")
        for i in range(8):
            a(f"s_add_u32 s3, s64, {(t+1)*8192 + i*4*24576}")
            a(f"buffer_load_dwordx4 v[{dst+8+4*i}:{dst+8+4*i+3}], v6, s[12:15], s3 offen")
    a("s_mov_b32 s3, 24576")
    a("v_mul_lo_u32 v8, v3, s3")
    a("v_lshl_add_u32 v8, v4, 4, v8")
    for Qt in range(2):
        for ks in range(4):
            a(f"s_add_u32 s3, s64, {Qt*16*24576 + ks*64}")
            a(f"buffer_load_dwordx4 v[{160+Qt*16+ks*4}:{163+Qt*16+ks*4}], v8, s[12:15], s3 offen")
    for r in range(4):
        a(f"v_mov_b32 v{12+r}, 0")
    a("s_waitcnt vmcnt(0)")
    for t in range(2):
        dst = 64 + 40 * t
        for i in range(10):
            a(f"ds_write_b128 v7, v[{dst+4*i}:{dst+4*i+3}] offset:{t*48*KV_LD + i*4*KV_LD}")
        for i in range(10, 12):
            a(f"ds_write_b128 v7, v[12:15] offset:{t*48*KV_LD + i*4*KV_LD}")
    a(f"v_mul_u32_u24 v9, {KV_LD}, v3")
    a("v_lshl_add_u32 v9, v4, 4, v9")
    a("v_add_u32 v9, s61, v9")
    a("v_bfe_u32 v10, v1, 2, 2")
    a("v_lshl_add_u32 v10, v4, 2, v10")
    a(f"v_mul_u32_u24 v10, {KV_LD}, v10")
    a("v_and_b32 v11, 3, v1")
    a("v_lshl_add_u32 v10, v11, 3, v10")
    a("v_add_u32 v10, s61, v10")
    a("s_waitcnt lgkmcnt(0)")
    for T in range(3):
        for ks in range(4):
            a(f"ds_read_b128 v[{64+16*T+4*ks}:{67+16*T+4*ks}], v9 offset:{T*16*KV_LD + ks*64}")
    for E in range(8):
        for T in range(3):
            a(f"ds_read_b64_tr_b16 v[{112+6*E+2*T}:{113+6*E+2*T}], v10 offset:{48*KV_LD + T*16*KV_LD + E*32}")
    a("v_lshlrev_b32 v11, 13, v3")
    a("v_lshl_add_u32 v11, v4, 3, v11")
    a(f"s_mul_i32 s65, s59, {32*8192}")
    a("s_add_u32 s65, s65, s63")
    a("s_waitcnt lgkmcnt(0)")
    sc = (128 ** -0.5) * 1.4426950408889634
    for Qt in range(2):
        for T in range(3):
            for r in range(4):
                a(f"v_mov_b32 v{48+4*T+r}, 0")
        a("s_nop 1")
        for ks in range(4):
            for T in range(3):
                k = 64 + 16 * T + 4 * ks
                q = 160 + Qt * 16 + ks * 4
                a(f"v_mfma_f32_16x16x32_bf16 v[{48+4*T}:{51+4*T}], v[{k}:{k+3}], v[{q}:{q+3}], v[{48+4*T}:{51+4*T}]")
        a("s_nop 7")
        a("s_nop 1")
        a("v_lshlrev_b32 v33, 2, v4")
        a("v_sub_u32 v33, v33, v3")
        a("v_mov_b32 v32, 0xff800000")
        for T in range(3):
            for r in range(4):
                lim = 8 + 16 * Qt - 16 * T - r
                a(f"v_cmp_ge_i32 vcc, {lim}, v33")
                a("s_nop 1")
                a(f"v_cndmask_b32 v{48+4*T+r}, v32, v{48+4*T+r}, vcc")
        a("v_max_f32 v32, v48, v49")
        for i in range(2, 12):
            a(f"v_max_f32 v32, v32, v{48+i}")
        xlane_reduce(a, "v_max_f32", 32, 33)
        a(f"v_mul_f32 v33, {f2h(-sc)}, v32")
        a(f"s_mov_b32 s3, {f2h(sc)}")
        for i in range(12):
            a(f"v_fma_f32 v{48+i}, v{48+i}, s3, v33")
            a(f"v_exp_f32 v{48+i}, v{48+i}")
        a("s_nop 0")
        a("v_add_f32 v32, v48, v49")
        for i in range(2, 12):
            a(f"v_add_f32 v32, v32, v{48+i}")
        xlane_reduce(a, "v_add_f32", 32, 33)
        a("v_rcp_f32 v32, v32")
        a("s_nop 0")
        for i in range(12):
            a(f"v_mul_f32 v{48+i}, v{48+i}, v32")
        for T in range(3):
            a(f"v_cvt_pk_bf16_f32 v{16+2*T}, v{48+4*T}, v{49+4*T}")
            a(f"v_cvt_pk_bf16_f32 v{17+2*T}, v{50+4*T}, v{51+4*T}")
        a("s_nop 1")
        for E in range(8):
            o = 192 + 4 * E
            a(f"v_mfma_f32_16x16x32_bf16 v[{o}:{o+3}], v[{112+6*E}:{115+6*E}], v[16:19], 0")
        for E in range(8):
            o = 192 + 4 * E
            a(f"v_mfma_f32_16x16x16_bf16 v[{o}:{o+3}], v[{116+6*E}:{117+6*E}], v[20:21], v[{o}:{o+3}]")
        a("s_nop 7")
        a("s_nop 1")
        a(f"s_add_u32 s3, s65, {Qt*16*8192}")
        for E in range(8):
            o = 192 + 4 * E
            a(f"v_cvt_pk_bf16_f32 v24, v{o}, v{o+1}")
            a(f"v_cvt_pk_bf16_f32 v25, v{o+2}, v{o+3}")
            a(f"buffer_store_dwordx2 v[24:25], v11, s[20:23], s3 offen offset:{E*32}")
            a("s_nop 1")
    a.label(f".{name}_done")
    kernel_end(a, name, 224, 80)
    return 4 * WL
```

```python
from asmlib import *
import struct
def f2h(x): return "0x%08x" % struct.unpack("<I", struct.pack("<f", x))[0]

H1_SZ = 256 * 192 * 8
H2_SZ = 256 * 1024 * 8
H3_SZ = 4096 * 8
HOP_TOTAL = 2 * (H1_SZ + H2_SZ + H3_SZ)

MEM_LD = 2064
KV_LD = 272
L_MEM = 0
L_RED = L_MEM + 8 * MEM_LD
L_Q = L_RED + 12288
L_K = L_Q + 8 * KV_LD
L_V = L_K + 48 * KV_LD
L_R2 = L_V + 48 * KV_LD
L_END = L_R2 + 512

def xlane_reduce(a, op, v, tmp):
    a(f"ds_swizzle_b32 v{tmp}, v{v} offset:0x401f")
    a("s_waitcnt lgkmcnt(0)")
    a(f"{op} v{v}, v{v}, v{tmp}")
    a(f"v_mov_b32 v{tmp}, v{v}")
    a("s_nop 1")
    a(f"v_permlane32_swap_b32 v{v}, v{tmp}")
    a("s_nop 1")
    a(f"{op} v{v}, v{v}, v{tmp}")

def poll_gather(a, name, n, voff, srd, soff, dst, tagv):
    lab = a.new("poll")
    lok = a.new("pok")
    a("s_mov_b32 s30, 0")
    a.label(lab)
    for i in range(n):
        a(f"buffer_load_dwordx4 v[{dst+4*i}:{dst+4*i+3}], v{voff}, s[{srd}:{srd+3}], {soff} offen offset:{(i*4096)%4096} sc1" if False else
          f"buffer_load_dwordx4 v[{dst+4*i}:{dst+4*i+3}], v{voff+ (0)}, s[{srd}:{srd+3}], s{31+i} offen sc1")
    a("s_waitcnt vmcnt(0)")
    a(f"v_cmp_eq_u32 vcc, v{dst+1}, v{tagv}")
    for i in range(n):
        for q in (1, 3):
            if i == 0 and q == 1: continue
            a(f"v_cmp_eq_u32 s[40:41], v{dst+4*i+q}, v{tagv}")
            a("s_and_b64 vcc, vcc, s[40:41]")
    a("s_cmp_eq_u64 vcc, exec")
    a(f"s_cbranch_scc1 {lok}")
    a("s_add_u32 s30, s30, 1")
    a("s_cmp_lt_u32 s30, 0x40000")
    a(f"s_cbranch_scc1 {lab}")
    a.label(lok)

def gen_chain(a, name, layer, WS):
    kernel_begin(a, name)
    a("s_cmp_ge_u32 s2, 256")
    a(f"s_cbranch_scc1 .{name}_done")
    a(f"s_load_dwordx2 s[4:5], s[0:1], {KA['ws']}")
    a(f"s_load_dwordx4 s[48:51], s[0:1], {KA['Wq']}")
    a(f"s_load_dwordx4 s[52:55], s[0:1], {KA['Wv']}")
    a(f"s_load_dwordx2 s[56:57], s[0:1], {KA['A_mem0']}")
    a("s_lshr_b32 s58, s2, 3")
    a("s_and_b32 s59, s2, 7")
    a("v_and_b32 v1, 63, v0")
    a("v_lshrrev_b32 v2, 6, v0")
    a("v_and_b32 v3, 15, v1")
    a("v_lshrrev_b32 v4, 4, v1")
    a("s_waitcnt lgkmcnt(0)")
    a("s_lshl_b32 s60, s58, 7")
    a("s_lshl_b32 s61, s59, 4")
    a("s_add_u32 s60, s60, s61")
    a("v_add_u32 v5, s60, v3")
    a("v_lshlrev_b32 v5, 1, v5")
    a("v_lshlrev_b32 v6, 8, v2")
    a("v_lshl_add_u32 v6, v4, 3, v6")
    a("v_lshlrev_b32 v6, 13, v6")
    a("v_add_u32 v5, v5, v6")
    for t in range(3):
        srd(a, 8, f"s{48+2*t}", f"s{49+2*t}", 1024 * 8192)
        for ks in range(8):
            for e in range(8):
                off = (ks * 32 + e) * 8192
                a(f"s_mov_b32 s3, {off}")
                a(f"buffer_load_ushort v{16+ks*8+e}, v5, s[8:11], s3 offen")
        a("s_waitcnt vmcnt(0)")
        for ks in range(8):
            for e in range(0, 8, 2):
                reg = 128 + (t * 8 + ks) * 4 + e // 2
                a(f"v_lshl_or_b32 v{reg}, v{16+ks*8+e+1}, 16, v{16+ks*8+e}")
    srd(a, 8, "s54", "s55", 4096 * 2048)
    a("s_lshl_b32 s60, s59, 7")
    a("v_lshlrev_b32 v5, 5, v2")
    a("v_add_u32 v5, v5, v3")
    a("v_add_u32 v5, s60, v5")
    a("v_lshlrev_b32 v5, 1, v5")
    a("s_lshl_b32 s60, s58, 7")
    a("v_lshlrev_b32 v6, 2, v4")
    a("v_add_u32 v6, s60, v6")
    a("v_lshlrev_b32 v6, 11, v6")
    a("v_add_u32 v5, v5, v6")
    for tile in range(2):
        for ks in range(4):
            for e in range(8):
                row = 32 * ks + (e if e < 4 else 16 + e - 4)
                a(f"s_mov_b32 s3, {row*2048 + tile*32}")
                a(f"buffer_load_ushort v{16+(tile*4+ks)*8+e}, v5, s[8:11], s3 offen")
    a("s_waitcnt vmcnt(0)")
    for tk in range(8):
        for e in range(0, 8, 2):
            a(f"v_lshl_or_b32 v{224+tk*4+e//2}, v{16+tk*8+e+1}, 16, v{16+tk*8+e}")
    hop = WS['HOP']
    a(f"s_add_u32 s60, s4, {hop:#x}")
    a("s_addc_u32 s61, s5, 0")
    srd(a, 8, "s60", "s61", HOP_TOTAL)
    a(f"s_add_u32 s60, s4, {WS['QKV']:#x}")
    a("s_addc_u32 s61, s5, 0")
    srd(a, 12, "s60", "s61", 2048 * 24576)
    a(f"s_add_u32 s60, s4, {WS['KVM']:#x}")
    a("s_addc_u32 s61, s5, 0")
    srd(a, 16, "s60", "s61", 64 * 2 * 8 * 8192)
    srd(a, 20, "s56", "s57", 16384)
    a("v_mov_b32 v8, 0")
    a("v_lshlrev_b32 v9, 2, v0")
    for base in (L_K + 40 * KV_LD, L_V + 40 * KV_LD):
        for i in range(3):
            if i < 2:
                a(f"ds_write_b32 v9, v8 offset:{base + i*1024}")
            else:
                a("v_cmp_gt_u32 vcc, 32, v0")
                a("s_and_saveexec_b64 s[40:41], vcc")
                a(f"ds_write_b32 v9, v8 offset:{base + i*1024}")
                a("s_mov_b64 exec, s[40:41]")
    a("v_lshlrev_b32 v9, 3, v0")
    for i in range(8):
        a(f"s_mov_b32 s3, {i*2048}")
        a(f"buffer_load_dwordx2 v[{16+2*i}:{17+2*i}], v9, s[20:23], s3 offen")
    a("s_waitcnt vmcnt(0)")
    for i in range(8):
        a(f"ds_write_b64 v9, v[{16+2*i}:{17+2*i}] offset:{L_MEM + i*MEM_LD}")
    a("v_lshlrev_b32 v110, 4, v0")
    a("v_and_b32 v8, 7, v1")
    a(f"v_mul_u32_u24 v111, {MEM_LD}, v8")
    a("v_lshl_add_u32 v111, v2, 9, v111")
    a("v_lshl_add_u32 v111, v4, 4, v111")
    a(f"v_mul_u32_u24 v112, 3072, v2")
    a("v_lshl_add_u32 v112, v1, 4, v112")
    a(f"v_add_u32 v112, {L_RED}, v112")
    a("v_lshrrev_b32 v8, 6, v0")
    a("v_bfe_u32 v9, v0, 3, 3")
    a("v_and_b32 v10, 7, v0")
    a("v_lshrrev_b32 v11, 1, v10")
    a("v_lshl_add_u32 v11, v11, 4, v9")
    a("v_lshlrev_b32 v11, 4, v11")
    a("v_and_b32 v12, 1, v10")
    a("v_lshl_add_u32 v11, v12, 3, v11")
    a("v_lshl_add_u32 v113, v8, 10, v11")
    a(f"v_add_u32 v113, {L_RED}, v113")
    a("s_mul_i32 s60, s58, 3")
    a("v_add_u32 v11, s60, v8")
    a("v_lshl_add_u32 v11, v11, 3, v9")
    a("v_lshlrev_b32 v11, 6, v11")
    a("s_lshl_b32 s60, s59, 3")
    a("v_add_u32 v11, s60, v11")
    a("v_add_u32 v11, v11, v10")
    a("v_lshlrev_b32 v114, 3, v11")
    a("v_subrev_u32 v11, 1, v8")
    a("v_lshl_add_u32 v11, v11, 3, v9")
    a("v_lshlrev_b32 v11, 13, v11")
    a("s_lshl_b32 s60, s58, 8")
    a("s_lshl_b32 s61, s59, 5")
    a("s_add_u32 s60, s60, s61")
    a("v_add_u32 v11, s60, v11")
    a("v_lshl_add_u32 v115, v10, 2, v11")
    a("v_lshrrev_b32 v8, 5, v0")
    a(f"v_mul_u32_u24 v116, {KV_LD}, v8")
    a("v_and_b32 v9, 31, v0")
    a("v_lshl_add_u32 v116, v9, 3, v116")
    a("v_lshrrev_b32 v8, 4, v0")
    a("v_and_b32 v9, 15, v0")
    a("s_mov_b32 s60, 24576")
    a("v_mul_lo_u32 v117, v8, s60")
    a("v_lshl_add_u32 v117, v9, 4, v117")
    a(f"v_mul_u32_u24 v118, {KV_LD}, v8")
    a("v_lshl_add_u32 v118, v9, 4, v118")
    a(f"v_mul_u32_u24 v119, {KV_LD}, v3")
    a("v_lshl_add_u32 v119, v4, 4, v119")
    a("v_and_b32 v8, 7, v1")
    a(f"v_mul_u32_u24 v120, {KV_LD}, v8")
    a("v_lshl_add_u32 v120, v4, 4, v120")
    a("v_bfe_u32 v8, v1, 2, 2")
    a("v_lshl_add_u32 v8, v4, 2, v8")
    a(f"v_mul_u32_u24 v121, {KV_LD}, v8")
    a("v_and_b32 v9, 3, v1")
    a("v_lshl_add_u32 v121, v9, 3, v121")
    a("s_lshl_b32 s60, s59, 5")
    a("v_lshl_add_u32 v8, v2, 3, v4")
    a("v_add_u32 v8, s60, v8")
    a("v_lshlrev_b32 v8, 5, v8")
    a("v_add_u32 v8, s58, v8")
    a("v_lshlrev_b32 v8, 5, v8")
    a("v_lshl_add_u32 v8, v3, 2, v8")
    a("v_lshlrev_b32 v122, 3, v8")
    a("v_lshrrev_b32 v8, 1, v0")
    a("v_lshlrev_b32 v8, 9, v8")
    a("s_lshl_b32 s60, s2, 1")
    a("v_add_u32 v8, s60, v8")
    a("v_and_b32 v9, 1, v0")
    a("v_add_u32 v8, v8, v9")
    a("v_lshlrev_b32 v123, 3, v8")
    a("v_lshlrev_b32 v124, 3, v0")
    a("s_mov_b32 s62, 0")
    a("s_waitcnt lgkmcnt(0)")
    a("s_barrier")
    a.label(f".{name}_step")
    a(f"s_add_u32 s63, s62, {1 + 64*layer}")
    a("v_mov_b32 v125, s63")
    a("s_and_b32 s64, s62, 1")
    a(f"s_mul_i32 s65, s64, {H1_SZ}")
    a(f"s_mul_i32 s66, s64, {H2_SZ}")
    a(f"s_add_u32 s66, s66, {2*H1_SZ}")
    a(f"s_mul_i32 s67, s64, {H3_SZ}")
    a(f"s_add_u32 s67, s67, {2*H1_SZ + 2*H2_SZ}")
    a(f"s_mul_i32 s3, s62, {32*24576}")
    a("s_lshl_b32 s60, s58, 8")
    a("s_add_u32 s3, s3, s60")
    a("s_add_u32 s60, s3, 8192")
    a(f"s_add_u32 s61, s60, {16*24576}")
    a("buffer_load_dwordx4 v[64:67], v117, s[12:15], s60 offen")
    a("buffer_load_dwordx4 v[68:71], v117, s[12:15], s61 offen")
    a("s_add_u32 s60, s3, 16384")
    a(f"s_add_u32 s61, s60, {16*24576}")
    a("buffer_load_dwordx4 v[72:75], v117, s[12:15], s60 offen")
    a("buffer_load_dwordx4 v[76:79], v117, s[12:15], s61 offen")
    for ks in range(8):
        a(f"ds_read_b128 v[{16+4*ks}:{19+4*ks}], v111 offset:{L_MEM + ks*64}")
    for t in range(3):
        for r in range(4):
            a(f"v_mov_b32 v{48+4*t+r}, 0")
    a("s_waitcnt lgkmcnt(0)")
    for ks in range(8):
        for t in range(3):
            w = 128 + (t * 8 + ks) * 4
            a(f"v_mfma_f32_16x16x32_bf16 v[{48+4*t}:{51+4*t}], v[{w}:{w+3}], v[{16+4*ks}:{19+4*ks}], v[{48+4*t}:{51+4*t}]")
    a("s_nop 7")
    a("s_nop 1")
    for t in range(3):
        a(f"ds_write_b128 v112, v[{48+4*t}:{51+4*t}] offset:{t*1024}")
    a("s_waitcnt lgkmcnt(0)")
    a("s_barrier")
    a("s_waitcnt vmcnt(0)")
    a(f"ds_write_b128 v118, v[64:67] offset:{L_K + 8*KV_LD}")
    a(f"ds_write_b128 v118, v[68:71] offset:{L_K + 24*KV_LD}")
    a(f"ds_write_b128 v118, v[72:75] offset:{L_V + 8*KV_LD}")
    a(f"ds_write_b128 v118, v[76:79] offset:{L_V + 24*KV_LD}")
    a("v_cmp_gt_u32 vcc, 192, v0")
    a("s_and_saveexec_b64 s[42:43], vcc")
    lsk = a.new("sk")
    a(f"s_cbranch_execz {lsk}")
    for w in range(4):
        a(f"ds_read_b64 v[{16+2*w}:{17+2*w}], v113 offset:{w*3072}")
    a("s_waitcnt lgkmcnt(0)")
    a("v_add_f32 v16, v16, v18")
    a("v_add_f32 v17, v17, v19")
    a("v_add_f32 v20, v20, v22")
    a("v_add_f32 v21, v21, v23")
    a("v_add_f32 v16, v16, v20")
    a("v_add_f32 v17, v17, v21")
    a("v_cvt_pk_bf16_f32 v16, v16, v17")
    a("v_mov_b32 v17, v125")
    a("buffer_store_dwordx2 v[16:17], v114, s[8:11], s65 offen sc1")
    a("v_cmp_le_u32 vcc, 64, v0")
    a("s_and_b64 exec, exec, vcc")
    a("s_mul_i32 s3, s62, 131072")
    a("buffer_store_dword v16, v115, s[16:19], s3 offen")
    a.label(lsk)
    a("s_mov_b64 exec, s[42:43]")
    a("s_mul_i32 s31, s58, 12288")
    a("s_add_u32 s31, s31, s65")
    a("s_add_u32 s32, s31, 4096")
    a("s_add_u32 s33, s31, 8192")
    poll_gather(a, name, 3, 110, 8, 0, 16, 125)
    for t, base in enumerate((L_Q, L_K, L_V)):
        a(f"v_mov_b32 v{17+4*t}, v{18+4*t}")
        a(f"ds_write_b64 v116, v[{16+4*t}:{17+4*t}] offset:{base}")
    a("s_waitcnt lgkmcnt(0)")
    a("s_barrier")
    for ks in range(4):
        a(f"ds_read_b128 v[{16+4*ks}:{19+4*ks}], v120 offset:{L_Q + ks*64}")
    for T in range(3):
        for ks in range(4):
            a(f"ds_read_b128 v[{60+16*T+4*ks}:{63+16*T+4*ks}], v119 offset:{L_K + T*16*KV_LD + ks*64}")
    for T in range(3):
        for r in range(4):
            a(f"v_mov_b32 v{48+4*T+r}, 0")
    a("s_waitcnt lgkmcnt(0)")
    for ks in range(4):
        for T in range(3):
            k = 60 + 16 * T + 4 * ks
            a(f"v_mfma_f32_16x16x32_bf16 v[{48+4*T}:{51+4*T}], v[{k}:{k+3}], v[{16+4*ks}:{19+4*ks}], v[{48+4*T}:{51+4*T}]")
    a("s_nop 7")
    a("s_nop 1")
    a("v_cmp_le_u32 vcc, 2, v4")
    a("v_mov_b32 v32, 0xff800000")
    for r in range(4):
        a(f"v_cndmask_b32 v{56+r}, v{56+r}, v32, vcc")
    a("v_max_f32 v32, v48, v49")
    for i in range(2, 12):
        a(f"v_max_f32 v32, v32, v{48+i}")
    xlane_reduce(a, "v_max_f32", 32, 33)
    sc = (128 ** -0.5) * 1.4426950408889634
    a(f"v_mul_f32 v33, {f2h(-sc)}, v32")
    a(f"s_mov_b32 s3, {f2h(sc)}")
    for i in range(12):
        a(f"v_fma_f32 v{48+i}, v{48+i}, s3, v33")
        a(f"v_exp_f32 v{48+i}, v{48+i}")
    a("s_nop 0")
    a("v_add_f32 v32, v48, v49")
    for i in range(2, 12):
        a(f"v_add_f32 v32, v32, v{48+i}")
    xlane_reduce(a, "v_add_f32", 32, 33)
    a("v_rcp_f32 v32, v32")
    a("s_nop 0")
    for i in range(12):
        a(f"v_mul_f32 v{48+i}, v{48+i}, v32")
    for T in range(3):
        a(f"v_cvt_pk_bf16_f32 v{16+2*T}, v{48+4*T}, v{49+4*T}")
        a(f"v_cvt_pk_bf16_f32 v{17+2*T}, v{50+4*T}, v{51+4*T}")
    for E in range(8):
        for T in range(3):
            a(f"ds_read_b64_tr_b16 v[{60+6*E+2*T}:{61+6*E+2*T}], v121 offset:{L_V + T*16*KV_LD + E*32}")
    a("s_waitcnt lgkmcnt(0)")
    for E in range(8):
        o = 24 + 4 * E
        a(f"v_mfma_f32_16x16x32_bf16 v[{o}:{o+3}], v[{60+6*E}:{63+6*E}], v[16:19], 0")
    for E in range(8):
        o = 24 + 4 * E
        a(f"v_mfma_f32_16x16x16_bf16 v[{o}:{o+3}], v[{64+6*E}:{65+6*E}], v[20:21], v[{o}:{o+3}]")
    a("s_nop 7")
    a("s_nop 1")
    for E in range(8):
        o = 24 + 4 * E
        a(f"v_cvt_pk_bf16_f32 v{64+2*E}, v{o}, v{o+1}")
        a(f"v_cvt_pk_bf16_f32 v{65+2*E}, v{o+2}, v{o+3}")
    a("s_nop 1")
    for tile in range(2):
        for ks in range(4):
            w = 224 + (tile * 4 + ks) * 4
            d = 16 + 4 * tile
            src = "0" if ks == 0 else f"v[{d}:{d+3}]"
            a(f"v_mfma_f32_16x16x32_bf16 v[{d}:{d+3}], v[{w}:{w+3}], v[{64+4*ks}:{67+4*ks}], {src}")
    a("s_nop 7")
    a("s_nop 1")
    a("v_cmp_gt_u32 vcc, 8, v3")
    a("s_and_saveexec_b64 s[42:43], vcc")
    for tile in range(2):
        d = 16 + 4 * tile
        a(f"v_mov_b32 v24, v{d}")
        a("v_mov_b32 v25, v125")
        a(f"v_mov_b32 v26, v{d+1}")
        a("v_mov_b32 v27, v125")
        a(f"v_mov_b32 v28, v{d+2}")
        a("v_mov_b32 v29, v125")
        a(f"v_mov_b32 v30, v{d+3}")
        a("v_mov_b32 v31, v125")
        a(f"s_add_u32 s3, s66, {tile*32768}")
        a("buffer_store_dwordx4 v[24:27], v122, s[8:11], s3 offen sc1")
        a("buffer_store_dwordx4 v[28:31], v122, s[8:11], s3 offen offset:16 sc1")
        a("s_nop 1")
    a("s_mov_b64 exec, s[42:43]")
    a("s_lshl_b32 s31, s2, 13")
    a("s_add_u32 s31, s31, s66")
    a("s_add_u32 s32, s31, 4096")
    poll_gather(a, name, 2, 110, 8, 0, 16, 125)
    a("v_add_f32 v16, v16, v20")
    a("v_add_f32 v18, v18, v22")
    xlane_reduce(a, "v_add_f32", 16, 33)
    xlane_reduce(a, "v_add_f32", 18, 33)
    a("v_mov_b32 v17, v18")
    a("v_lshlrev_b32 v8, 7, v2")
    a("v_lshl_add_u32 v8, v3, 3, v8")
    a("v_cmp_gt_u32 vcc, 16, v1")
    a("s_and_saveexec_b64 s[42:43], vcc")
    a(f"ds_write_b64 v8, v[16:17] offset:{L_R2}")
    a("s_mov_b64 exec, s[42:43]")
    a("s_waitcnt lgkmcnt(0)")
    a("s_barrier")
    a("v_cmp_gt_u32 vcc, 16, v0")
    a("s_and_saveexec_b64 s[42:43], vcc")
    lsk2 = a.new("sk")
    a(f"s_cbranch_execz {lsk2}")
    for w in range(4):
        a(f"ds_read_b64 v[{16+2*w}:{17+2*w}], v124 offset:{L_R2 + w*128}")
    a("s_waitcnt lgkmcnt(0)")
    a("v_add_f32 v16, v16, v18")
    a("v_add_f32 v17, v17, v19")
    a("v_add_f32 v20, v20, v22")
    a("v_add_f32 v21, v21, v23")
    a("v_add_f32 v16, v16, v20")
    a("v_add_f32 v17, v17, v21")
    a("v_cvt_pk_bf16_f32 v16, v16, v17")
    a("v_mov_b32 v17, v125")
    a("buffer_store_dwordx2 v[16:17], v123, s[8:11], s67 offen sc1")
    a.label(lsk2)
    a("s_mov_b64 exec, s[42:43]")
    a("s_cmp_eq_u32 s62, 63")
    a(f"s_cbranch_scc1 .{name}_done")
    for i in range(8):
        a(f"s_add_u32 s{31+i}, s67, {i*4096}")
    poll_gather(a, name, 8, 110, 8, 0, 16, 125)
    for i in range(8):
        a(f"v_mov_b32 v{17+4*i}, v{18+4*i}")
        a(f"ds_write_b64 v124, v[{16+4*i}:{17+4*i}] offset:{L_MEM + i*MEM_LD}")
    a("s_waitcnt lgkmcnt(0)")
    a("s_barrier")
    a("s_add_u32 s62, s62, 1")
    a(f"s_branch .{name}_step")
    a.label(f".{name}_done")
    kernel_end(a, name, 256, 80)
    return L_END

def gen_zero(a, name, WS):
    n = HOP_TOTAL
    kernel_begin(a, name)
    nwg = (n + 4095) // 4096
    a(f"s_cmp_ge_u32 s2, {nwg}")
    a(f"s_cbranch_scc1 .{name}_done")
    a(f"s_load_dwordx2 s[4:5], s[0:1], {KA['ws']}")
    a("s_waitcnt lgkmcnt(0)")
    a(f"s_add_u32 s4, s4, {WS['HOP']:#x}")
    a("s_addc_u32 s5, s5, 0")
    srd(a, 8, "s4", "s5", n)
    a("s_lshl_b32 s3, s2, 12")
    a("v_lshlrev_b32 v1, 4, v0")
    a("v_add_u32 v1, s3, v1")
    for i in range(4):
        a(f"v_mov_b32 v{4+i}, 0")
    a("buffer_store_dwordx4 v[4:7], v1, s[8:11], 0 offen")
    a.label(f".{name}_done")
    kernel_end(a, name, 16, 24)
    return nwg
```

```python
from asmlib import *

def gen_gemm(a, name, *, BM, BN, M, N, K, A_off, lda, W_args, ldw, out_arg, out_off, ldc, epi,
             res_arg=None, res_off=0, bias_arg=None):
    MT = BM // 64
    NT = BN // 64
    mtiles = M // BM
    ntiles = N // BN
    ntasks = mtiles * ntiles
    A_BYTES = BM * 128
    W_BYTES = 64 * BN * 2
    STAGE = A_BYTES + W_BYTES
    NST = 3
    A_INSTR = BM // 8 // 4
    W_ROWS_PER_INSTR = 1024 // (BN * 2)
    W_INSTR = 64 // W_ROWS_PER_INSTR // 4
    NLOAD = A_INSTR + W_INSTR
    KB = K // 64
    nper = N // len(W_args)
    ACC = 128
    kernel_begin(a, name)
    a(f"s_cmp_ge_u32 s2, {ntasks}")
    a(f"s_cbranch_scc1 .{name}_done")
    a(f"s_load_dwordx2 s[6:7], s[0:1], {KA['ws']}")
    for i, w in enumerate(W_args):
        a(f"s_load_dwordx2 s[{28+2*i}:{29+2*i}], s[0:1], {KA[w]}")
    if out_arg != 'ws':
        a(f"s_load_dwordx2 s[34:35], s[0:1], {KA[out_arg]}")
    if res_arg is not None and res_arg != 'ws':
        a(f"s_load_dwordx2 s[36:37], s[0:1], {KA[res_arg]}")
    if bias_arg is not None:
        a(f"s_load_dwordx2 s[38:39], s[0:1], {KA[bias_arg]}")
    lm = mtiles.bit_length() - 1
    assert (1 << lm) == mtiles
    a(f"s_and_b32 s40, s2, {mtiles-1}")
    a(f"s_lshr_b32 s41, s2, {lm}")
    a("s_waitcnt lgkmcnt(0)")
    a(f"s_add_u32 s4, s6, {A_off:#x}")
    a("s_addc_u32 s5, s7, 0")
    srd(a, 8, "s4", "s5", M * lda)
    a(f"s_mul_i32 s42, s41, {BN}")
    if len(W_args) > 1:
        a("s_mov_b32 s4, s28")
        a("s_mov_b32 s5, s29")
        for i in range(1, len(W_args)):
            a(f"s_cmp_ge_u32 s42, {i*nper}")
            a(f"s_cselect_b32 s4, s{28+2*i}, s4")
            a(f"s_cselect_b32 s5, s{29+2*i}, s5")
        a(f"s_and_b32 s43, s42, {nper-1}")
    else:
        a("s_mov_b32 s4, s28")
        a("s_mov_b32 s5, s29")
        a("s_mov_b32 s43, s42")
    srd(a, 12, "s4", "s5", K * ldw)
    a(f"s_mul_i32 s44, s40, {BM*lda}")
    a("s_lshl_b32 s45, s43, 1")
    a("v_and_b32 v1, 63, v0")
    a("v_lshrrev_b32 v2, 6, v0")
    a("s_nop 0")
    a("v_readfirstlane_b32 s46, v2")
    a("v_lshrrev_b32 v3, 3, v1")
    a("v_and_b32 v4, 7, v1")
    a("v_xor_b32 v4, v4, v3")
    a("v_lshlrev_b32 v4, 4, v4")
    a(f"s_mov_b32 s47, {lda}")
    a("v_mul_lo_u32 v3, v3, s47")
    a("v_add_u32 v10, v3, v4")
    if BN == 128:
        a("v_lshrrev_b32 v3, 4, v1")
        a("v_and_b32 v4, 15, v1")
        a("v_lshlrev_b32 v5, 2, v3")
        a("v_xor_b32 v4, v4, v5")
    else:
        a("v_lshrrev_b32 v3, 3, v1")
        a("v_and_b32 v4, 7, v1")
        a("v_lshrrev_b32 v5, 1, v3")
        a("v_and_b32 v5, 1, v5")
        a("v_lshlrev_b32 v5, 2, v5")
        a("v_xor_b32 v4, v4, v5")
    a("v_lshlrev_b32 v4, 4, v4")
    a(f"s_mov_b32 s47, {ldw}")
    a("v_mul_lo_u32 v3, v3, s47")
    a("v_add_u32 v11, v3, v4")
    a(f"s_mul_i32 s48, s46, {A_INSTR*8*lda}")
    a("s_add_u32 s44, s44, s48")
    a(f"s_mul_i32 s48, s46, {W_INSTR*W_ROWS_PER_INSTR*ldw}")
    a("s_add_u32 s45, s45, s48")
    a(f"s_mul_i32 s49, s46, {A_INSTR*1024}")
    a(f"s_mul_i32 s50, s46, {W_INSTR*1024}")
    a(f"s_add_u32 s50, s50, {A_BYTES}")
    a("v_lshrrev_b32 v3, 1, v2")
    a("v_and_b32 v4, 1, v2")
    a("v_and_b32 v5, 31, v1")
    a("v_lshrrev_b32 v6, 5, v1")
    a(f"v_mul_u32_u24 v7, {BM//2}, v3")
    a("v_add_u32 v7, v7, v5")
    a("v_lshlrev_b32 v7, 7, v7")
    a("v_and_b32 v8, 7, v1")
    a("v_xor_b32 v8, v8, v6")
    a("v_lshlrev_b32 v8, 4, v8")
    a("v_add_u32 v12, v7, v8")
    for t in range(1, 4):
        a(f"v_xor_b32 v{12+t}, {t<<5}, v12")
    a("v_lshrrev_b32 v7, 4, v1")
    a("v_and_b32 v7, 1, v7")
    a("v_lshrrev_b32 v8, 2, v1")
    a("v_and_b32 v8, 3, v8")
    a("v_and_b32 v9, 3, v1")
    a(f"v_mul_u32_u24 v16, {BN//16}, v4")
    a("v_lshl_add_u32 v16, v7, 1, v16")
    a("v_lshrrev_b32 v17, 1, v9")
    a("v_add_u32 v16, v16, v17")
    if BN == 128:
        a("v_lshlrev_b32 v17, 2, v8")
    else:
        a("v_lshrrev_b32 v17, 1, v8")
        a("v_lshlrev_b32 v17, 2, v17")
    a("v_lshl_add_u32 v18, v6, 3, v8")
    a(f"v_mul_u32_u24 v18, {BN*2}, v18")
    a("v_and_b32 v19, 1, v9")
    a("v_lshl_add_u32 v18, v19, 3, v18")
    a(f"v_add_u32 v18, {A_BYTES}, v18")
    for nt in range(NT):
        a(f"v_add_u32 v19, {nt*4}, v16")
        a("v_xor_b32 v19, v19, v17")
        a(f"v_lshl_add_u32 v{20+nt}, v19, 4, v18")
    for i in range(MT * NT * 16):
        a(f"v_mov_b32 v{ACC+i}, 0")
    def issue_stage():
        for q in range(A_INSTR):
            a(f"s_add_u32 s52, s51, s49")
            if q:
                a(f"s_add_u32 s52, s52, {q*1024}")
            a("s_mov_b32 m0, s52")
            a(f"s_add_u32 s53, s44, {q*8*lda}")
            a("buffer_load_dwordx4 v10, s[8:11], s53 offen lds")
        for q in range(W_INSTR):
            a(f"s_add_u32 s52, s51, s50")
            if q:
                a(f"s_add_u32 s52, s52, {q*1024}")
            a("s_mov_b32 m0, s52")
            a(f"s_add_u32 s53, s45, {q*W_ROWS_PER_INSTR*ldw}")
            a("buffer_load_dwordx4 v11, s[12:15], s53 offen lds")
        a("s_add_u32 s44, s44, 128")
        a(f"s_add_u32 s45, s45, {64*ldw}")
        a(f"s_add_u32 s51, s51, {STAGE}")
        a(f"s_cmp_eq_u32 s51, {NST*STAGE}")
        a("s_cselect_b32 s51, 0, s51")
    a("s_mov_b32 s51, 0")
    issue_stage()
    issue_stage()
    a("s_mov_b32 s54, 0")
    a("s_mov_b32 s55, 0")
    a.label(f".{name}_loop")
    a(f"s_waitcnt vmcnt({NLOAD})")
    a("s_barrier")
    a(f"s_cmp_ge_u32 s55, {KB-2}")
    lskip = a.new("sk")
    a(f"s_cbranch_scc1 {lskip}")
    issue_stage()
    a.label(lskip)
    for t in range(4):
        a(f"v_add_u32 v{24+t}, s54, v{12+t}")
    for nt in range(NT):
        a(f"v_add_u32 v{28+nt}, s54, v{20+nt}")
    FA = [32, 56]
    FW = [48, 72]
    def reads(t):
        s = t & 1
        for mt in range(MT):
            a(f"ds_read_b128 v[{FA[s]+4*mt}:{FA[s]+4*mt+3}], v{24+t} offset:{mt*4096}")
        for nt in range(NT):
            a(f"ds_read_b64_tr_b16 v[{FW[s]+4*nt}:{FW[s]+4*nt+1}], v{28+nt} offset:{t*16*BN*2}")
            a(f"ds_read_b64_tr_b16 v[{FW[s]+4*nt+2}:{FW[s]+4*nt+3}], v{28+nt} offset:{(t*16+4)*BN*2}")
    NR = MT + 2 * NT
    reads(0)
    for t in range(4):
        if t < 3:
            reads(t + 1)
            a(f"s_waitcnt lgkmcnt({NR})")
        else:
            a("s_waitcnt lgkmcnt(0)")
        s = t & 1
        for mt in range(MT):
            for nt in range(NT):
                d = ACC + (mt * NT + nt) * 16
                a(f"v_mfma_f32_32x32x16_bf16 v[{d}:{d+15}], v[{FW[s]+4*nt}:{FW[s]+4*nt+3}], v[{FA[s]+4*mt}:{FA[s]+4*mt+3}], v[{d}:{d+15}]")
    a(f"s_add_u32 s54, s54, {STAGE}")
    a(f"s_cmp_eq_u32 s54, {NST*STAGE}")
    a("s_cselect_b32 s54, 0, s54")
    a("s_add_u32 s55, s55, 1")
    a(f"s_cmp_lt_u32 s55, {KB-1}")
    a(f"s_cbranch_scc1 .{name}_loop")
    a(f"s_cmp_lt_u32 s55, {KB}")
    lfin = a.new("fin")
    a(f"s_cbranch_scc0 {lfin}")
    a("s_waitcnt vmcnt(0)")
    a(f"s_branch .{name}_loop")
    a.label(lfin)
    a("s_nop 15")
    a("s_nop 15")
    if out_arg == 'ws':
        a(f"s_add_u32 s4, s6, {out_off:#x}")
        a("s_addc_u32 s5, s7, 0")
    else:
        a("s_mov_b32 s4, s34")
        a("s_mov_b32 s5, s35")
    srd(a, 16, "s4", "s5", M * ldc)
    if epi in ('res', 'biasres'):
        if res_arg == 'ws':
            a(f"s_add_u32 s4, s6, {res_off:#x}")
            a("s_addc_u32 s5, s7, 0")
        else:
            a("s_mov_b32 s4, s36")
            a("s_mov_b32 s5, s37")
        srd(a, 20, "s4", "s5", M * ldc)
    if epi in ('gelu', 'biasres'):
        srd(a, 24, "s38", "s39", N * 2)
    a(f"s_mul_i32 s4, s40, {BM}")
    a(f"v_mul_u32_u24 v7, {BM//2}, v3")
    a("v_add_u32 v7, v7, v5")
    a("v_add_u32 v7, s4, v7")
    a(f"s_mov_b32 s47, {ldc}")
    a("v_mul_lo_u32 v7, v7, s47")
    a(f"v_mul_u32_u24 v8, {BN//2}, v4")
    a("v_lshl_add_u32 v8, v6, 2, v8")
    a("v_add_u32 v8, s42, v8")
    a("v_lshlrev_b32 v8, 1, v8")
    a("v_add_u32 v7, v7, v8")
    for nt in range(NT):
        if epi in ('gelu', 'biasres'):
            for g in range(4):
                a(f"buffer_load_dwordx2 v[{56+2*g}:{57+2*g}], v8, s[24:27], 0 offen offset:{nt*64+g*16}")
        for mt in range(MT):
            d = ACC + (mt * NT + nt) * 16
            a(f"s_mov_b32 s4, {mt*32*ldc}")
            if epi in ('res', 'biasres'):
                for g in range(4):
                    a(f"buffer_load_dwordx2 v[{40+2*g}:{41+2*g}], v7, s[20:23], s4 offen offset:{nt*64+g*16}")
            a("s_waitcnt vmcnt(0)")
            for g in range(4):
                r0 = d + 4 * g
                if epi == 'store':
                    a(f"v_cvt_pk_bf16_f32 v32, v{r0}, v{r0+1}")
                    a(f"v_cvt_pk_bf16_f32 v33, v{r0+2}, v{r0+3}")
                else:
                    a(f"v_cvt_pk_bf16_f32 v32, v{r0}, v{r0+1}")
                    a(f"v_cvt_pk_bf16_f32 v33, v{r0+2}, v{r0+3}")
                    a("v_lshlrev_b32 v34, 16, v32")
                    a("v_and_b32 v35, 0xffff0000, v32")
                    a("v_lshlrev_b32 v36, 16, v33")
                    a("v_and_b32 v37, 0xffff0000, v33")
                    if epi in ('gelu', 'biasres'):
                        b = 56 + 2 * g
                        a(f"v_lshlrev_b32 v38, 16, v{b}")
                        a("v_add_f32 v34, v34, v38")
                        a(f"v_and_b32 v38, 0xffff0000, v{b}")
                        a("v_add_f32 v35, v35, v38")
                        a(f"v_lshlrev_b32 v38, 16, v{b+1}")
                        a("v_add_f32 v36, v36, v38")
                        a(f"v_and_b32 v38, 0xffff0000, v{b+1}")
                        a("v_add_f32 v37, v37, v38")
                        a("v_cvt_pk_bf16_f32 v32, v34, v35")
                        a("v_cvt_pk_bf16_f32 v33, v36, v37")
                        a("v_lshlrev_b32 v34, 16, v32")
                        a("v_and_b32 v35, 0xffff0000, v32")
                        a("v_lshlrev_b32 v36, 16, v33")
                        a("v_and_b32 v37, 0xffff0000, v33")
                    if epi == 'gelu':
                        for u in (34, 35, 36, 37):
                            a(f"v_mul_f32 v38, v{u}, v{u}")
                            a(f"v_mul_f32 v38, v38, v{u}")
                            a(f"v_mov_b32 v39, v{u}")
                            a("v_fmac_f32 v39, 0x3d372713, v38")
                            a("v_mul_f32 v39, 0xc0135761, v39")
                            a("v_exp_f32 v39, v39")
                            a("s_nop 0")
                            a("v_add_f32 v39, 1.0, v39")
                            a("v_rcp_f32 v39, v39")
                            a("s_nop 0")
                            a(f"v_mul_f32 v{u}, v{u}, v39")
                    if epi in ('res', 'biasres'):
                        x = 40 + 2 * g
                        a(f"v_lshlrev_b32 v38, 16, v{x}")
                        a("v_add_f32 v34, v34, v38")
                        a(f"v_and_b32 v38, 0xffff0000, v{x}")
                        a("v_add_f32 v35, v35, v38")
                        a(f"v_lshlrev_b32 v38, 16, v{x+1}")
                        a("v_add_f32 v36, v36, v38")
                        a(f"v_and_b32 v38, 0xffff0000, v{x+1}")
                        a("v_add_f32 v37, v37, v38")
                    a("v_cvt_pk_bf16_f32 v32, v34, v35")
                    a("v_cvt_pk_bf16_f32 v33, v36, v37")
                a(f"buffer_store_dwordx2 v[32:33], v7, s[16:19], s4 offen offset:{nt*64+g*16}")
                a("s_nop 1")
    a.label(f".{name}_done")
    kernel_end(a, name, 256, 64)
    return ntasks, NST * STAGE
```

```python
from asmlib import *

def wave_reduce_add(a, v, tmp):
    for m in (1, 2, 4, 8, 16):
        a(f"ds_swizzle_b32 v{tmp}, v{v} offset:{(m << 10) | 0x1f:#x}")
        a("s_waitcnt lgkmcnt(0)")
        a(f"v_add_f32 v{v}, v{v}, v{tmp}")
    a(f"v_mov_b32 v{tmp}, v{v}")
    a("s_nop 1")
    a(f"v_permlane32_swap_b32 v{v}, v{tmp}")
    a("s_nop 1")
    a(f"v_add_f32 v{v}, v{v}, v{tmp}")

def gen_ln(a, name, src_arg, src_off, dst_off, double):
    kernel_begin(a, name)
    a("s_cmp_ge_u32 s2, 512")
    a(f"s_cbranch_scc1 .{name}_done")
    a(f"s_load_dwordx2 s[4:5], s[0:1], {KA[src_arg]}")
    a(f"s_load_dwordx2 s[6:7], s[0:1], {KA['ws']}")
    a("s_waitcnt lgkmcnt(0)")
    if src_off:
        a(f"s_add_u32 s4, s4, {src_off:#x}")
        a("s_addc_u32 s5, s5, 0")
    a(f"s_add_u32 s6, s6, {dst_off:#x}")
    a("s_addc_u32 s7, s7, 0")
    srd(a, 8, "s4", "s5", 2048 * 2048)
    srd(a, 12, "s6", "s7", 2048 * 2048)
    a("v_lshrrev_b32 v1, 6, v0")
    a("v_and_b32 v2, 63, v0")
    a("s_lshl_b32 s3, s2, 2")
    a("v_add_u32 v1, s3, v1")
    a("v_lshlrev_b32 v1, 11, v1")
    a("v_lshlrev_b32 v2, 4, v2")
    a("v_add_u32 v1, v1, v2")
    a("buffer_load_dwordx4 v[4:7], v1, s[8:11], 0 offen")
    a("buffer_load_dwordx4 v[8:11], v1, s[8:11], 0 offen offset:1024")
    a("s_waitcnt vmcnt(0)")
    for i in range(8):
        a(f"v_lshlrev_b32 v{16+2*i}, 16, v{4+i}")
        a(f"v_and_b32 v{17+2*i}, 0xffff0000, v{4+i}")
    for it in range(2 if double else 1):
        a("v_add_f32 v32, v16, v17")
        for i in range(2, 16):
            a(f"v_add_f32 v32, v32, v{16+i}")
        wave_reduce_add(a, 32, 33)
        a("v_mul_f32 v32, 0x3a800000, v32")
        for i in range(16):
            a(f"v_sub_f32 v{16+i}, v{16+i}, v32")
        a("v_mul_f32 v34, v16, v16")
        for i in range(1, 16):
            a(f"v_fmac_f32 v34, v{16+i}, v{16+i}")
        wave_reduce_add(a, 34, 33)
        a("v_mov_b32 v35, 0x3727c5ac")
        a("v_fmac_f32 v35, 0x3a800000, v34")
        a("v_rsq_f32 v35, v35")
        a("s_nop 0")
        for i in range(16):
            a(f"v_mul_f32 v{16+i}, v{16+i}, v35")
        for i in range(8):
            a(f"v_cvt_pk_bf16_f32 v{4+i}, v{16+2*i}, v{17+2*i}")
        if double and it == 0:
            for i in range(8):
                a(f"v_lshlrev_b32 v{16+2*i}, 16, v{4+i}")
                a(f"v_and_b32 v{17+2*i}, 0xffff0000, v{4+i}")
    a("buffer_store_dwordx4 v[4:7], v1, s[12:15], 0 offen")
    a("buffer_store_dwordx4 v[8:11], v1, s[12:15], 0 offen offset:1024")
    a.label(f".{name}_done")
    kernel_end(a, name, 40, 24)
```

```python
import sys, struct
from asmlib import *
from k_ln import gen_ln
from k_gemm import gen_gemm
from k_chain import gen_chain, gen_zero
from k_attn import gen_attn

MB = 1 << 20
WS = dict(Y=0, X1=4*MB, X2=8*MB, QKV=16*MB, O=64*MB, H=80*MB, KVM=96*MB, HOP=112*MB)

def main(out_path):
    a = Asm()
    launches = []
    gen_ln(a, "ln_a_kernel", 'A_x', 0, WS['Y'], False)
    gen_ln(a, "ln_b_kernel", 'ws', WS['X1'], WS['Y'], True)
    gen_ln(a, "ln_c_kernel", 'ws', WS['X2'], WS['Y'], False)
    nq, ldsq = gen_gemm(a, "gemm_qkv_kernel", BM=256, BN=128, M=2048, N=12288, K=1024, A_off=WS['Y'], lda=2048,
             W_args=['Wq', 'Wk', 'Wv'], ldw=8192, out_arg='ws', out_off=WS['QKV'], ldc=24576, epi='store')
    n0, lds0 = gen_gemm(a, "gemm_wo0_kernel", BM=128, BN=64, M=2048, N=1024, K=4096, A_off=WS['O'], lda=8192,
             W_args=['Wo'], ldw=2048, out_arg='ws', out_off=WS['X1'], ldc=2048, epi='res', res_arg='A_x')
    gen_gemm(a, "gemm_wo1_kernel", BM=128, BN=64, M=2048, N=1024, K=4096, A_off=WS['O'], lda=8192,
             W_args=['Wo'], ldw=2048, out_arg='ws', out_off=WS['X1'], ldc=2048, epi='res', res_arg='ws', res_off=WS['X2'])
    n1, lds1 = gen_gemm(a, "gemm_w1_kernel", BM=256, BN=128, M=2048, N=3584, K=1024, A_off=WS['Y'], lda=2048,
             W_args=['w1'], ldw=7168, out_arg='ws', out_off=WS['H'], ldc=7168, epi='gelu', bias_arg='b1')
    n2, lds2 = gen_gemm(a, "gemm_w2a_kernel", BM=128, BN=64, M=2048, N=1024, K=3584, A_off=WS['H'], lda=7168,
             W_args=['w2'], ldw=2048, out_arg='ws', out_off=WS['X2'], ldc=2048, epi='biasres', res_arg='ws', res_off=WS['X1'], bias_arg='b2')
    gen_gemm(a, "gemm_w2b_kernel", BM=128, BN=64, M=2048, N=1024, K=3584, A_off=WS['H'], lda=7168,
             W_args=['w2'], ldw=2048, out_arg='out', out_off=0, ldc=2048, epi='biasres', res_arg='ws', res_off=WS['X1'], bias_arg='b2')
    ldsc = gen_chain(a, "chain0_kernel", 0, WS)
    gen_chain(a, "chain1_kernel", 1, WS)
    nz = gen_zero(a, "zero_kernel", WS)
    ldsa = gen_attn(a, "attn_kernel", WS)
    launches = [("zero_kernel", nz, 256, 0),
        ("ln_a_kernel", 512, 256, 0), ("gemm_qkv_kernel", nq, 256, ldsq), ("chain0_kernel", 256, 256, ldsc), ("attn_kernel", 512, 256, ldsa),
        ("gemm_wo0_kernel", n0, 256, lds0), ("ln_b_kernel", 512, 256, 0), ("gemm_w1_kernel", n1, 256, lds1), ("gemm_w2a_kernel", n2, 256, lds2),
        ("ln_c_kernel", 512, 256, 0), ("gemm_qkv_kernel", nq, 256, ldsq), ("chain1_kernel", 256, 256, ldsc), ("attn_kernel", 512, 256, ldsa),
        ("gemm_wo1_kernel", n0, 256, lds0), ("ln_b_kernel", 512, 256, 0), ("gemm_w1_kernel", n1, 256, lds1), ("gemm_w2b_kernel", n2, 256, lds2)]
    hdr = open('interleave_layers__memory_aug_recurrent_mem_tr__mixer_channel_mlp__prompt.s.ref').read().split("; @launch")[0]
    s = hdr
    for k, g, b, l in launches:
        s += f"; @launch kernel={k} grid=({g},1,1) block=({b},1,1) lds={l}\n"
    s += '.amdgcn_target "amdgcn-amd-amdhsa--gfx950"\n'
    s += a.text()
    open(out_path, 'w').write(s)

if __name__ == "__main__":
    main(sys.argv[1] if len(sys.argv) > 1 else 'interleave_layers__memory_aug_recurrent_mem_tr__mixer_channel_mlp__prompt.s')
```

```python
from asmlib import *
import struct
def f2h(x): return "0x%08x" % struct.unpack("<I", struct.pack("<f", x))[0]

H1_SZ = 256 * 192 * 8
H2_SZ = 256 * 1024 * 8
H3_SZ = 4096 * 8
HOP_TOTAL = 2 * (H1_SZ + H2_SZ + H3_SZ)

MEM_LD = 2064
KV_LD = 272
L_MEM = 0
L_RED = L_MEM + 8 * MEM_LD
L_Q = L_RED + 12288
L_K = L_Q + 8 * KV_LD
L_V = L_K + 48 * KV_LD
L_R2 = L_V + 48 * KV_LD
L_END = L_R2 + 512

def xlane_reduce(a, op, v, tmp):
    a(f"ds_swizzle_b32 v{tmp}, v{v} offset:0x401f")
    a("s_waitcnt lgkmcnt(0)")
    a(f"{op} v{v}, v{v}, v{tmp}")
    a(f"v_mov_b32 v{tmp}, v{v}")
    a("s_nop 1")
    a(f"v_permlane32_swap_b32 v{v}, v{tmp}")
    a("s_nop 1")
    a(f"{op} v{v}, v{v}, v{tmp}")

def poll_gather(a, name, n, voff, srd, soff, dst, tagv):
    lab = a.new("poll")
    lok = a.new("pok")
    a("s_mov_b32 s30, 0")
    a.label(lab)
    for i in range(n):
        a(f"buffer_load_dwordx4 v[{dst+4*i}:{dst+4*i+3}], v{voff}, s[{srd}:{srd+3}], {soff} offen offset:{(i*4096)%4096} sc1" if False else
          f"buffer_load_dwordx4 v[{dst+4*i}:{dst+4*i+3}], v{voff+ (0)}, s[{srd}:{srd+3}], s{31+i} offen sc1")
    a("s_waitcnt vmcnt(0)")
    a(f"v_cmp_eq_u32 vcc, v{dst+1}, v{tagv}")
    for i in range(n):
        for q in (1, 3):
            if i == 0 and q == 1: continue
            a(f"v_cmp_eq_u32 s[40:41], v{dst+4*i+q}, v{tagv}")
            a("s_and_b64 vcc, vcc, s[40:41]")
    a("s_cmp_eq_u64 vcc, exec")
    a(f"s_cbranch_scc1 {lok}")
    a("s_add_u32 s30, s30, 1")
    a("s_cmp_lt_u32 s30, 0x40000")
    a(f"s_cbranch_scc1 {lab}")
    a.label(lok)

def gen_chain(a, name, layer, WS, prof=False):
    def stamp(i):
        if not prof: return
        a("s_memtime s[44:45]")
        a("s_waitcnt lgkmcnt(0)")
        if i >= 0:
            a("s_sub_u32 s46, s44, s47")
            a(f"s_add_u32 s{70+i}, s{70+i}, s46")
        a("s_mov_b32 s47, s44")
    kernel_begin(a, name)
    a("s_cmp_ge_u32 s2, 256")
    a(f"s_cbranch_scc1 .{name}_done")
    a(f"s_load_dwordx2 s[4:5], s[0:1], {KA['ws']}")
    a(f"s_load_dwordx4 s[48:51], s[0:1], {KA['Wq']}")
    a(f"s_load_dwordx4 s[52:55], s[0:1], {KA['Wv']}")
    a(f"s_load_dwordx2 s[56:57], s[0:1], {KA['A_mem0']}")
    a("s_lshr_b32 s58, s2, 3")
    a("s_and_b32 s59, s2, 7")
    a("v_and_b32 v1, 63, v0")
    a("v_lshrrev_b32 v2, 6, v0")
    a("v_and_b32 v3, 15, v1")
    a("v_lshrrev_b32 v4, 4, v1")
    a("s_waitcnt lgkmcnt(0)")
    a("s_lshl_b32 s60, s58, 7")
    a("s_lshl_b32 s61, s59, 4")
    a("s_add_u32 s60, s60, s61")
    a("v_add_u32 v5, s60, v3")
    a("v_lshlrev_b32 v5, 1, v5")
    a("v_lshlrev_b32 v6, 8, v2")
    a("v_lshl_add_u32 v6, v4, 3, v6")
    a("v_lshlrev_b32 v6, 13, v6")
    a("v_add_u32 v5, v5, v6")
    for t in range(3):
        srd(a, 8, f"s{48+2*t}", f"s{49+2*t}", 1024 * 8192)
        for ks in range(8):
            for e in range(8):
                off = (ks * 32 + e) * 8192
                a(f"s_mov_b32 s3, {off}")
                a(f"buffer_load_ushort v{16+ks*8+e}, v5, s[8:11], s3 offen")
        a("s_waitcnt vmcnt(0)")
        for ks in range(8):
            for e in range(0, 8, 2):
                reg = 128 + (t * 8 + ks) * 4 + e // 2
                a(f"v_lshl_or_b32 v{reg}, v{16+ks*8+e+1}, 16, v{16+ks*8+e}")
    srd(a, 8, "s54", "s55", 4096 * 2048)
    a("s_lshl_b32 s60, s59, 7")
    a("v_lshlrev_b32 v5, 5, v2")
    a("v_add_u32 v5, v5, v3")
    a("v_add_u32 v5, s60, v5")
    a("v_lshlrev_b32 v5, 1, v5")
    a("s_lshl_b32 s60, s58, 7")
    a("v_lshlrev_b32 v6, 2, v4")
    a("v_add_u32 v6, s60, v6")
    a("v_lshlrev_b32 v6, 11, v6")
    a("v_add_u32 v5, v5, v6")
    for tile in range(2):
        for ks in range(4):
            for e in range(8):
                row = 32 * ks + (e if e < 4 else 16 + e - 4)
                a(f"s_mov_b32 s3, {row*2048 + tile*32}")
                a(f"buffer_load_ushort v{16+(tile*4+ks)*8+e}, v5, s[8:11], s3 offen")
    a("s_waitcnt vmcnt(0)")
    for tk in range(8):
        for e in range(0, 8, 2):
            a(f"v_lshl_or_b32 v{224+tk*4+e//2}, v{16+tk*8+e+1}, 16, v{16+tk*8+e}")
    hop = WS['HOP']
    a(f"s_add_u32 s60, s4, {hop:#x}")
    a("s_addc_u32 s61, s5, 0")
    srd(a, 8, "s60", "s61", HOP_TOTAL)
    a(f"s_add_u32 s60, s4, {WS['QKV']:#x}")
    a("s_addc_u32 s61, s5, 0")
    srd(a, 12, "s60", "s61", 2048 * 24576)
    a(f"s_add_u32 s60, s4, {WS['KVM']:#x}")
    a("s_addc_u32 s61, s5, 0")
    srd(a, 16, "s60", "s61", 64 * 2 * 8 * 8192)
    srd(a, 20, "s56", "s57", 16384)
    a("v_mov_b32 v8, 0")
    a("v_lshlrev_b32 v9, 2, v0")
    for base in (L_K + 40 * KV_LD, L_V + 40 * KV_LD):
        for i in range(3):
            if i < 2:
                a(f"ds_write_b32 v9, v8 offset:{base + i*1024}")
            else:
                a("v_cmp_gt_u32 vcc, 32, v0")
                a("s_and_saveexec_b64 s[40:41], vcc")
                a(f"ds_write_b32 v9, v8 offset:{base + i*1024}")
                a("s_mov_b64 exec, s[40:41]")
    a("v_lshlrev_b32 v9, 3, v0")
    for i in range(8):
        a(f"s_mov_b32 s3, {i*2048}")
        a(f"buffer_load_dwordx2 v[{16+2*i}:{17+2*i}], v9, s[20:23], s3 offen")
    a("s_waitcnt vmcnt(0)")
    for i in range(8):
        a(f"ds_write_b64 v9, v[{16+2*i}:{17+2*i}] offset:{L_MEM + i*MEM_LD}")
    a("v_lshlrev_b32 v110, 4, v0")
    a("v_and_b32 v8, 7, v1")
    a(f"v_mul_u32_u24 v111, {MEM_LD}, v8")
    a("v_lshl_add_u32 v111, v2, 9, v111")
    a("v_lshl_add_u32 v111, v4, 4, v111")
    a(f"v_mul_u32_u24 v112, 3072, v2")
    a("v_lshl_add_u32 v112, v1, 4, v112")
    a(f"v_add_u32 v112, {L_RED}, v112")
    a("v_lshrrev_b32 v8, 6, v0")
    a("v_bfe_u32 v9, v0, 3, 3")
    a("v_and_b32 v10, 7, v0")
    a("v_lshrrev_b32 v11, 1, v10")
    a("v_lshl_add_u32 v11, v11, 4, v9")
    a("v_lshlrev_b32 v11, 4, v11")
    a("v_and_b32 v12, 1, v10")
    a("v_lshl_add_u32 v11, v12, 3, v11")
    a("v_lshl_add_u32 v113, v8, 10, v11")
    a(f"v_add_u32 v113, {L_RED}, v113")
    a("s_mul_i32 s60, s58, 3")
    a("v_add_u32 v11, s60, v8")
    a("v_lshl_add_u32 v11, v11, 3, v9")
    a("v_lshlrev_b32 v11, 6, v11")
    a("s_lshl_b32 s60, s59, 3")
    a("v_add_u32 v11, s60, v11")
    a("v_add_u32 v11, v11, v10")
    a("v_lshlrev_b32 v114, 3, v11")
    a("v_subrev_u32 v11, 1, v8")
    a("v_lshl_add_u32 v11, v11, 3, v9")
    a("v_lshlrev_b32 v11, 13, v11")
    a("s_lshl_b32 s60, s58, 8")
    a("s_lshl_b32 s61, s59, 5")
    a("s_add_u32 s60, s60, s61")
    a("v_add_u32 v11, s60, v11")
    a("v_lshl_add_u32 v115, v10, 2, v11")
    a("v_lshrrev_b32 v8, 5, v0")
    a(f"v_mul_u32_u24 v116, {KV_LD}, v8")
    a("v_and_b32 v9, 31, v0")
    a("v_lshl_add_u32 v116, v9, 3, v116")
    a("v_lshrrev_b32 v8, 4, v0")
    a("v_and_b32 v9, 15, v0")
    a("s_mov_b32 s60, 24576")
    a("v_mul_lo_u32 v117, v8, s60")
    a("v_lshl_add_u32 v117, v9, 4, v117")
    a(f"v_mul_u32_u24 v118, {KV_LD}, v8")
    a("v_lshl_add_u32 v118, v9, 4, v118")
    a(f"v_mul_u32_u24 v119, {KV_LD}, v3")
    a("v_lshl_add_u32 v119, v4, 4, v119")
    a("v_and_b32 v8, 7, v1")
    a(f"v_mul_u32_u24 v120, {KV_LD}, v8")
    a("v_lshl_add_u32 v120, v4, 4, v120")
    a("v_bfe_u32 v8, v1, 2, 2")
    a("v_lshl_add_u32 v8, v4, 2, v8")
    a(f"v_mul_u32_u24 v121, {KV_LD}, v8")
    a("v_and_b32 v9, 3, v1")
    a("v_lshl_add_u32 v121, v9, 3, v121")
    a("s_lshl_b32 s60, s59, 5")
    a("v_lshl_add_u32 v8, v2, 3, v4")
    a("v_add_u32 v8, s60, v8")
    a("v_lshlrev_b32 v8, 5, v8")
    a("v_add_u32 v8, s58, v8")
    a("v_lshlrev_b32 v8, 5, v8")
    a("v_lshl_add_u32 v8, v3, 2, v8")
    a("v_lshlrev_b32 v122, 3, v8")
    a("v_lshrrev_b32 v8, 1, v0")
    a("v_lshlrev_b32 v8, 9, v8")
    a("s_lshl_b32 s60, s2, 1")
    a("v_add_u32 v8, s60, v8")
    a("v_and_b32 v9, 1, v0")
    a("v_add_u32 v8, v8, v9")
    a("v_lshlrev_b32 v123, 3, v8")
    a("v_lshlrev_b32 v124, 3, v0")
    a("s_mov_b32 s62, 0")
    a("s_waitcnt lgkmcnt(0)")
    a("s_barrier")
    for i in range(10):
        a(f"s_mov_b32 s{70+i}, 0")
    stamp(-1)
    a.label(f".{name}_step")
    a(f"s_add_u32 s63, s62, {1 + 64*layer}")
    a("v_mov_b32 v125, s63")
    a("s_and_b32 s64, s62, 1")
    a(f"s_mul_i32 s65, s64, {H1_SZ}")
    a(f"s_mul_i32 s66, s64, {H2_SZ}")
    a(f"s_add_u32 s66, s66, {2*H1_SZ}")
    a(f"s_mul_i32 s67, s64, {H3_SZ}")
    a(f"s_add_u32 s67, s67, {2*H1_SZ + 2*H2_SZ}")
    a(f"s_mul_i32 s3, s62, {32*24576}")
    a("s_lshl_b32 s60, s58, 8")
    a("s_add_u32 s3, s3, s60")
    a("s_add_u32 s60, s3, 8192")
    a(f"s_add_u32 s61, s60, {16*24576}")
    a("buffer_load_dwordx4 v[64:67], v117, s[12:15], s60 offen")
    a("buffer_load_dwordx4 v[68:71], v117, s[12:15], s61 offen")
    a("s_add_u32 s60, s3, 16384")
    a(f"s_add_u32 s61, s60, {16*24576}")
    a("buffer_load_dwordx4 v[72:75], v117, s[12:15], s60 offen")
    a("buffer_load_dwordx4 v[76:79], v117, s[12:15], s61 offen")
    for ks in range(8):
        a(f"ds_read_b128 v[{16+4*ks}:{19+4*ks}], v111 offset:{L_MEM + ks*64}")
    for t in range(3):
        for r in range(4):
            a(f"v_mov_b32 v{48+4*t+r}, 0")
    a("s_waitcnt lgkmcnt(0)")
    for ks in range(8):
        for t in range(3):
            w = 128 + (t * 8 + ks) * 4
            a(f"v_mfma_f32_16x16x32_bf16 v[{48+4*t}:{51+4*t}], v[{w}:{w+3}], v[{16+4*ks}:{19+4*ks}], v[{48+4*t}:{51+4*t}]")
    a("s_nop 7")
    a("s_nop 1")
    for t in range(3):
        a(f"ds_write_b128 v112, v[{48+4*t}:{51+4*t}] offset:{t*1024}")
    a("s_waitcnt lgkmcnt(0)")
    a("s_barrier")
    stamp(0)
    a("s_waitcnt vmcnt(0)")
    a(f"ds_write_b128 v118, v[64:67] offset:{L_K + 8*KV_LD}")
    a(f"ds_write_b128 v118, v[68:71] offset:{L_K + 24*KV_LD}")
    a(f"ds_write_b128 v118, v[72:75] offset:{L_V + 8*KV_LD}")
    a(f"ds_write_b128 v118, v[76:79] offset:{L_V + 24*KV_LD}")
    stamp(1)
    a("v_cmp_gt_u32 vcc, 192, v0")
    a("s_and_saveexec_b64 s[42:43], vcc")
    lsk = a.new("sk")
    a(f"s_cbranch_execz {lsk}")
    for w in range(4):
        a(f"ds_read_b64 v[{16+2*w}:{17+2*w}], v113 offset:{w*3072}")
    a("s_waitcnt lgkmcnt(0)")
    a("v_add_f32 v16, v16, v18")
    a("v_add_f32 v17, v17, v19")
    a("v_add_f32 v20, v20, v22")
    a("v_add_f32 v21, v21, v23")
    a("v_add_f32 v16, v16, v20")
    a("v_add_f32 v17, v17, v21")
    a("v_cvt_pk_bf16_f32 v16, v16, v17")
    a("v_mov_b32 v17, v125")
    a("buffer_store_dwordx2 v[16:17], v114, s[8:11], s65 offen sc1")
    a("v_cmp_le_u32 vcc, 64, v0")
    a("s_and_b64 exec, exec, vcc")
    a("s_mul_i32 s3, s62, 131072")
    a("buffer_store_dword v16, v115, s[16:19], s3 offen")
    a.label(lsk)
    a("s_mov_b64 exec, s[42:43]")
    stamp(2)
    a("s_mul_i32 s31, s58, 12288")
    a("s_add_u32 s31, s31, s65")
    a("s_add_u32 s32, s31, 4096")
    a("s_add_u32 s33, s31, 8192")
    poll_gather(a, name, 3, 110, 8, 0, 16, 125)
    for t, base in enumerate((L_Q, L_K, L_V)):
        a(f"v_mov_b32 v{17+4*t}, v{18+4*t}")
        a(f"ds_write_b64 v116, v[{16+4*t}:{17+4*t}] offset:{base}")
    a("s_waitcnt lgkmcnt(0)")
    a("s_barrier")
    stamp(3)
    for ks in range(4):
        a(f"ds_read_b128 v[{16+4*ks}:{19+4*ks}], v120 offset:{L_Q + ks*64}")
    for T in range(3):
        for ks in range(4):
            a(f"ds_read_b128 v[{60+16*T+4*ks}:{63+16*T+4*ks}], v119 offset:{L_K + T*16*KV_LD + ks*64}")
    for T in range(3):
        for r in range(4):
            a(f"v_mov_b32 v{48+4*T+r}, 0")
    a("s_waitcnt lgkmcnt(0)")
    for ks in range(4):
        for T in range(3):
            k = 60 + 16 * T + 4 * ks
            a(f"v_mfma_f32_16x16x32_bf16 v[{48+4*T}:{51+4*T}], v[{k}:{k+3}], v[{16+4*ks}:{19+4*ks}], v[{48+4*T}:{51+4*T}]")
    a("s_nop 7")
    a("s_nop 1")
    a("v_cmp_le_u32 vcc, 2, v4")
    a("v_mov_b32 v32, 0xff800000")
    for r in range(4):
        a(f"v_cndmask_b32 v{56+r}, v{56+r}, v32, vcc")
    a("v_max_f32 v32, v48, v49")
    for i in range(2, 12):
        a(f"v_max_f32 v32, v32, v{48+i}")
    xlane_reduce(a, "v_max_f32", 32, 33)
    sc = (128 ** -0.5) * 1.4426950408889634
    a(f"v_mul_f32 v33, {f2h(-sc)}, v32")
    a(f"s_mov_b32 s3, {f2h(sc)}")
    for i in range(12):
        a(f"v_fma_f32 v{48+i}, v{48+i}, s3, v33")
        a(f"v_exp_f32 v{48+i}, v{48+i}")
    a("s_nop 0")
    a("v_add_f32 v32, v48, v49")
    for i in range(2, 12):
        a(f"v_add_f32 v32, v32, v{48+i}")
    xlane_reduce(a, "v_add_f32", 32, 33)
    a("v_rcp_f32 v32, v32")
    a("s_nop 0")
    for i in range(12):
        a(f"v_mul_f32 v{48+i}, v{48+i}, v32")
    for T in range(3):
        a(f"v_cvt_pk_bf16_f32 v{16+2*T}, v{48+4*T}, v{49+4*T}")
        a(f"v_cvt_pk_bf16_f32 v{17+2*T}, v{50+4*T}, v{51+4*T}")
    for E in range(8):
        for T in range(3):
            a(f"ds_read_b64_tr_b16 v[{60+6*E+2*T}:{61+6*E+2*T}], v121 offset:{L_V + T*16*KV_LD + E*32}")
    a("s_waitcnt lgkmcnt(0)")
    for E in range(8):
        o = 24 + 4 * E
        a(f"v_mfma_f32_16x16x32_bf16 v[{o}:{o+3}], v[{60+6*E}:{63+6*E}], v[16:19], 0")
    for E in range(8):
        o = 24 + 4 * E
        a(f"v_mfma_f32_16x16x16_bf16 v[{o}:{o+3}], v[{64+6*E}:{65+6*E}], v[20:21], v[{o}:{o+3}]")
    a("s_nop 7")
    a("s_nop 1")
    for E in range(8):
        o = 24 + 4 * E
        a(f"v_cvt_pk_bf16_f32 v{64+2*E}, v{o}, v{o+1}")
        a(f"v_cvt_pk_bf16_f32 v{65+2*E}, v{o+2}, v{o+3}")
    a("s_nop 1")
    for tile in range(2):
        for ks in range(4):
            w = 224 + (tile * 4 + ks) * 4
            d = 16 + 4 * tile
            src = "0" if ks == 0 else f"v[{d}:{d+3}]"
            a(f"v_mfma_f32_16x16x32_bf16 v[{d}:{d+3}], v[{w}:{w+3}], v[{64+4*ks}:{67+4*ks}], {src}")
    a("s_nop 7")
    a("s_nop 1")
    a("v_cmp_gt_u32 vcc, 8, v3")
    a("s_and_saveexec_b64 s[42:43], vcc")
    for tile in range(2):
        d = 16 + 4 * tile
        a(f"v_mov_b32 v24, v{d}")
        a("v_mov_b32 v25, v125")
        a(f"v_mov_b32 v26, v{d+1}")
        a("v_mov_b32 v27, v125")
        a(f"v_mov_b32 v28, v{d+2}")
        a("v_mov_b32 v29, v125")
        a(f"v_mov_b32 v30, v{d+3}")
        a("v_mov_b32 v31, v125")
        a(f"s_add_u32 s3, s66, {tile*32768}")
        a("buffer_store_dwordx4 v[24:27], v122, s[8:11], s3 offen sc1")
        a("buffer_store_dwordx4 v[28:31], v122, s[8:11], s3 offen offset:16 sc1")
        a("s_nop 1")
    a("s_mov_b64 exec, s[42:43]")
    stamp(4)
    a("s_lshl_b32 s31, s2, 13")
    a("s_add_u32 s31, s31, s66")
    a("s_add_u32 s32, s31, 4096")
    poll_gather(a, name, 2, 110, 8, 0, 16, 125)
    stamp(5)
    a("v_add_f32 v16, v16, v20")
    a("v_add_f32 v18, v18, v22")
    xlane_reduce(a, "v_add_f32", 16, 33)
    xlane_reduce(a, "v_add_f32", 18, 33)
    a("v_mov_b32 v17, v18")
    a("v_lshlrev_b32 v8, 7, v2")
    a("v_lshl_add_u32 v8, v3, 3, v8")
    a("v_cmp_gt_u32 vcc, 16, v1")
    a("s_and_saveexec_b64 s[42:43], vcc")
    a(f"ds_write_b64 v8, v[16:17] offset:{L_R2}")
    a("s_mov_b64 exec, s[42:43]")
    a("s_waitcnt lgkmcnt(0)")
    a("s_barrier")
    a("v_cmp_gt_u32 vcc, 16, v0")
    a("s_and_saveexec_b64 s[42:43], vcc")
    lsk2 = a.new("sk")
    a(f"s_cbranch_execz {lsk2}")
    for w in range(4):
        a(f"ds_read_b64 v[{16+2*w}:{17+2*w}], v124 offset:{L_R2 + w*128}")
    a("s_waitcnt lgkmcnt(0)")
    a("v_add_f32 v16, v16, v18")
    a("v_add_f32 v17, v17, v19")
    a("v_add_f32 v20, v20, v22")
    a("v_add_f32 v21, v21, v23")
    a("v_add_f32 v16, v16, v20")
    a("v_add_f32 v17, v17, v21")
    a("v_cvt_pk_bf16_f32 v16, v16, v17")
    a("v_mov_b32 v17, v125")
    a("buffer_store_dwordx2 v[16:17], v123, s[8:11], s67 offen sc1")
    a.label(lsk2)
    a("s_mov_b64 exec, s[42:43]")
    stamp(6)
    a("s_cmp_eq_u32 s62, 63")
    a(f"s_cbranch_scc1 .{name}_fin")
    for i in range(8):
        a(f"s_add_u32 s{31+i}, s67, {i*4096}")
    poll_gather(a, name, 8, 110, 8, 0, 16, 125)
    for i in range(8):
        a(f"v_mov_b32 v{17+4*i}, v{18+4*i}")
        a(f"ds_write_b64 v124, v[{16+4*i}:{17+4*i}] offset:{L_MEM + i*MEM_LD}")
    a("s_waitcnt lgkmcnt(0)")
    a("s_barrier")
    stamp(7)
    a("s_add_u32 s62, s62, 1")
    a(f"s_branch .{name}_step")
    a.label(f".{name}_fin")
    if prof:
        a(f"s_load_dwordx2 s[4:5], s[0:1], {KA['dbg']}")
        a("s_waitcnt lgkmcnt(0)")
        srd(a, 8, "s4", "s5", 256)
        a("s_cmp_eq_u32 s2, 5")
        a(f"s_cbranch_scc0 .{name}_done")
        a("v_cmp_eq_u32 vcc, 0, v0")
        a("s_and_saveexec_b64 s[42:43], vcc")
        a("v_mov_b32 v1, 0")
        for i in range(8):
            a(f"v_mov_b32 v2, s{70+i}")
            a(f"buffer_store_dword v2, v1, s[8:11], 0 offen offset:{i*4}")
            a("s_nop 1")
    a.label(f".{name}_done")
    kernel_end(a, name, 256, 96)
    return L_END

def gen_zero(a, name, WS):
    n = HOP_TOTAL
    kernel_begin(a, name)
    nwg = (n + 4095) // 4096
    a(f"s_cmp_ge_u32 s2, {nwg}")
    a(f"s_cbranch_scc1 .{name}_done")
    a(f"s_load_dwordx2 s[4:5], s[0:1], {KA['ws']}")
    a("s_waitcnt lgkmcnt(0)")
    a(f"s_add_u32 s4, s4, {WS['HOP']:#x}")
    a("s_addc_u32 s5, s5, 0")
    srd(a, 8, "s4", "s5", n)
    a("s_lshl_b32 s3, s2, 12")
    a("v_lshlrev_b32 v1, 4, v0")
    a("v_add_u32 v1, s3, v1")
    for i in range(4):
        a(f"v_mov_b32 v{4+i}, 0")
    a("buffer_store_dwordx4 v[4:7], v1, s[8:11], 0 offen")
    a.label(f".{name}_done")
    kernel_end(a, name, 16, 24)
    return nwg
```

```python
from asmlib import *
import struct
def f2h(x): return "0x%08x" % struct.unpack("<I", struct.pack("<f", x))[0]

B1_SZ = 256 * 192 * 8
BX_SZ = 8 * 32 * 256 * 8
BM_SZ = 8 * 4096 * 8
B1_OFF = 0
BX_OFF = 2 * B1_SZ
BM_OFF = BX_OFF + 2 * BX_SZ
HOP_TOTAL = BM_OFF + 2 * BM_SZ

MEM_LD = 2064
L_MEM = 0
L_RED = 8 * MEM_LD
L_WV = (L_RED + 12288 + 255) // 256 * 256
WV_Q = 0
WV_K = 8 * 256
WV_V = WV_K + 48 * 256
WV_SZ = WV_V + 48 * 256
L_END = L_WV + 4 * WV_SZ

def xlane_reduce(a, op, v, tmp):
    a(f"ds_swizzle_b32 v{tmp}, v{v} offset:0x401f")
    a("s_waitcnt lgkmcnt(0)")
    a(f"{op} v{v}, v{v}, v{tmp}")
    a(f"v_mov_b32 v{tmp}, v{v}")
    a("s_nop 1")
    a(f"v_permlane32_swap_b32 v{v}, v{tmp}")
    a("s_nop 1")
    a(f"{op} v{v}, v{v}, v{tmp}")

def poll(a, loads, tags, tagv):
    lab = a.new("poll"); lok = a.new("pok")
    a("s_mov_b32 s30, 0")
    a.label(lab)
    for l in loads: a(l)
    a("s_waitcnt vmcnt(0)")
    a(f"v_cmp_eq_u32 vcc, v{tags[0]}, v{tagv}")
    for t in tags[1:]:
        a(f"v_cmp_eq_u32 s[40:41], v{t}, v{tagv}")
        a("s_and_b64 vcc, vcc, s[40:41]")
    a("s_cmp_eq_u64 vcc, exec")
    a(f"s_cbranch_scc1 {lok}")
    a("s_add_u32 s30, s30, 1")
    a("s_cmp_lt_u32 s30, 0x40000")
    a(f"s_cbranch_scc1 {lab}")
    a.label(lok)

def gen_chain(a, name, layer, WS, prof=False):
    def stamp(i):
        if not prof: return
        a("s_memtime s[44:45]")
        a("s_waitcnt lgkmcnt(0)")
        if i >= 0:
            a("s_sub_u32 s46, s44, s47")
            a(f"s_add_u32 s{70+i}, s{70+i}, s46")
        a("s_mov_b32 s47, s44")
    def local_store(instr):
        l1 = a.new("ls"); l2 = a.new("le")
        a("s_cmp_eq_u32 s68, 1")
        a(f"s_cbranch_scc0 {l1}")
        a(instr)
        a(f"s_branch {l2}")
        a.label(l1)
        a(instr + " sc1")
        a.label(l2)
    kernel_begin(a, name)
    a("s_cmp_ge_u32 s2, 256")
    a(f"s_cbranch_scc1 .{name}_done")
    a(f"s_load_dwordx2 s[4:5], s[0:1], {KA['ws']}")
    a(f"s_load_dwordx4 s[48:51], s[0:1], {KA['Wq']}")
    a(f"s_load_dwordx4 s[52:55], s[0:1], {KA['Wv']}")
    a(f"s_load_dwordx2 s[56:57], s[0:1], {KA['A_mem0']}")
    a(f"s_load_dwordx2 s[26:27], s[0:1], {KA['dbg']}")
    a("v_and_b32 v1, 63, v0")
    a("v_lshrrev_b32 v2, 6, v0")
    a("v_and_b32 v3, 15, v1")
    a("v_lshrrev_b32 v4, 4, v1")
    a("s_nop 0")
    a("v_readfirstlane_b32 s69, v2")
    a("s_waitcnt lgkmcnt(0)")
    srd(a, 8, "s26", "s27", 256)
    a("s_getreg_b32 s28, hwreg(HW_REG_XCC_ID)")
    a("s_and_b32 s28, s28, 7")
    a("v_mov_b32 v8, 0")
    a("s_cmp_eq_u32 s69, 0")
    lr1 = a.new("r1")
    a(f"s_cbranch_scc0 {lr1}")
    a("v_mov_b32 v9, 1")
    a("s_lshl_b32 s29, s28, 2")
    a("v_mov_b32 v10, s29")
    a("v_cmp_eq_u32 vcc, 0, v1")
    a("s_and_saveexec_b64 s[42:43], vcc")
    a("buffer_atomic_add v9, v10, s[8:11], 0 offen sc0 sc1")
    a("s_waitcnt vmcnt(0)")
    a("s_mov_b64 exec, s[42:43]")
    a("v_mov_b32 v11, 0")
    a("v_cmp_eq_u32 vcc, 0, v1")
    a("s_and_saveexec_b64 s[42:43], vcc")
    a(f"ds_write_b32 v11, v9 offset:{L_RED}")
    a("s_mov_b64 exec, s[42:43]")
    a("s_waitcnt lgkmcnt(0)")
    a.label(lr1)
    a("s_barrier")
    a("v_mov_b32 v11, 0")
    a(f"ds_read_b32 v9, v11 offset:{L_RED}")
    a("s_waitcnt lgkmcnt(0)")
    a("v_readfirstlane_b32 s29, v9")
    lw = a.new("rw"); lwo = a.new("rwo")
    a("v_and_b32 v10, 7, v1")
    a("v_lshlrev_b32 v10, 2, v10")
    a("s_mov_b32 s30, 0")
    a.label(lw)
    a("buffer_load_dword v9, v10, s[8:11], 0 offen sc0 sc1")
    a("s_waitcnt vmcnt(0)")
    a("v_mov_b32 v12, v9")
    for m in (1, 2, 4):
        a(f"ds_swizzle_b32 v13, v12 offset:{(m << 10) | 0x1f:#x}")
        a("s_waitcnt lgkmcnt(0)")
        a("v_add_u32 v12, v12, v13")
    a("s_nop 0")
    a("v_readfirstlane_b32 s31, v12")
    a("s_cmp_eq_u32 s31, 256")
    a(f"s_cbranch_scc1 {lwo}")
    a("s_add_u32 s30, s30, 1")
    a("s_cmp_lt_u32 s30, 0x40000")
    a(f"s_cbranch_scc1 {lw}")
    a.label(lwo)
    a("v_cmp_eq_u32 vcc, 32, v9")
    a("s_cmp_eq_u64 vcc, exec")
    a("s_cselect_b32 s68, 1, 0")
    a("s_lshl_b32 s31, s28, 5")
    a("s_add_u32 s31, s31, s29")
    a("s_cmp_eq_u32 s68, 1")
    a("s_cselect_b32 s25, s31, s2")
    a("s_and_b32 s25, s25, 255")
    a("s_lshr_b32 s24, s25, 5")
    a("s_and_b32 s23, s25, 31")
    a("s_lshr_b32 s58, s25, 3")
    a("s_and_b32 s59, s25, 7")
    a("s_lshl_b32 s22, s24, 2")
    a("s_add_u32 s22, s22, s69")
    a("s_barrier")
    a("s_lshl_b32 s60, s58, 7")
    a("s_lshl_b32 s61, s59, 4")
    a("s_add_u32 s60, s60, s61")
    a("v_add_u32 v5, s60, v3")
    a("v_lshlrev_b32 v5, 1, v5")
    a("v_lshlrev_b32 v6, 8, v2")
    a("v_lshl_add_u32 v6, v4, 3, v6")
    a("v_lshlrev_b32 v6, 13, v6")
    a("v_add_u32 v5, v5, v6")
    for t in range(3):
        srd(a, 8, f"s{48+2*t}", f"s{49+2*t}", 1024 * 8192)
        for ks in range(8):
            for e in range(8):
                a(f"s_mov_b32 s3, {(ks * 32 + e) * 8192}")
                a(f"buffer_load_ushort v{16+ks*8+e}, v5, s[8:11], s3 offen")
        a("s_waitcnt vmcnt(0)")
        for ks in range(8):
            for e in range(0, 8, 2):
                reg = 128 + (t * 8 + ks) * 4 + e // 2
                a(f"v_lshl_or_b32 v{reg}, v{16+ks*8+e+1}, 16, v{16+ks*8+e}")
    srd(a, 8, "s54", "s55", 4096 * 2048)
    a("s_lshl_b32 s60, s23, 5")
    a("v_add_u32 v5, s60, v3")
    a("v_lshlrev_b32 v5, 1, v5")
    a("s_lshl_b32 s60, s22, 7")
    a("v_lshlrev_b32 v6, 2, v4")
    a("v_add_u32 v6, s60, v6")
    a("v_lshlrev_b32 v6, 11, v6")
    a("v_add_u32 v5, v5, v6")
    for tile in range(2):
        for ks in range(4):
            for e in range(8):
                row = 32 * ks + (e if e < 4 else 16 + e - 4)
                a(f"s_mov_b32 s3, {row*2048 + tile*32}")
                a(f"buffer_load_ushort v{16+(tile*4+ks)*8+e}, v5, s[8:11], s3 offen")
    a("s_waitcnt vmcnt(0)")
    for tk in range(8):
        for e in range(0, 8, 2):
            a(f"v_lshl_or_b32 v{224+tk*4+e//2}, v{16+tk*8+e+1}, 16, v{16+tk*8+e}")
    a(f"s_add_u32 s60, s4, {WS['HOP']:#x}")
    a("s_addc_u32 s61, s5, 0")
    srd(a, 8, "s60", "s61", HOP_TOTAL)
    a(f"s_add_u32 s60, s4, {WS['QKV']:#x}")
    a("s_addc_u32 s61, s5, 0")
    srd(a, 12, "s60", "s61", 2048 * 24576)
    a(f"s_add_u32 s60, s4, {WS['KVM']:#x}")
    a("s_addc_u32 s61, s5, 0")
    srd(a, 16, "s60", "s61", 64 * 2 * 8 * 8192)
    a("s_mov_b32 s60, s56")
    a("s_mov_b32 s61, s57")
    srd(a, 52, "s60", "s61", 16384)
    a(f"s_mul_i32 s21, s69, {WV_SZ}")
    a(f"s_add_u32 s21, s21, {L_WV}")
    for r in range(4):
        a(f"v_mov_b32 v{8+r}, 0")
    a("v_lshlrev_b32 v12, 4, v1")
    a("v_add_u32 v12, s21, v12")
    for base in (WV_K + 40 * 256, WV_V + 40 * 256):
        a(f"ds_write_b128 v12, v[8:11] offset:{base}")
        a(f"ds_write_b128 v12, v[8:11] offset:{base + 1024}")
    a("v_lshlrev_b32 v124, 3, v0")
    for i in range(8):
        a(f"s_mov_b32 s3, {i*2048}")
        a(f"buffer_load_dwordx2 v[{16+2*i}:{17+2*i}], v124, s[52:55], s3 offen")
    a("s_waitcnt vmcnt(0)")
    for i in range(8):
        a(f"ds_write_b64 v124, v[{16+2*i}:{17+2*i}] offset:{L_MEM + i*MEM_LD}")
    a("v_lshlrev_b32 v110, 4, v0")
    a("v_lshlrev_b32 v109, 4, v1")
    a("v_and_b32 v8, 7, v1")
    a(f"v_mul_u32_u24 v111, {MEM_LD}, v8")
    a("v_lshl_add_u32 v111, v2, 9, v111")
    a("v_lshl_add_u32 v111, v4, 4, v111")
    a(f"v_mul_u32_u24 v112, 3072, v2")
    a("v_lshl_add_u32 v112, v1, 4, v112")
    a(f"v_add_u32 v112, {L_RED}, v112")
    a("v_lshrrev_b32 v8, 6, v0")
    a("v_bfe_u32 v9, v0, 3, 3")
    a("v_and_b32 v10, 7, v0")
    a("v_lshrrev_b32 v11, 1, v10")
    a("v_lshl_add_u32 v11, v11, 4, v9")
    a("v_lshlrev_b32 v11, 4, v11")
    a("v_and_b32 v12, 1, v10")
    a("v_lshl_add_u32 v11, v12, 3, v11")
    a("v_lshl_add_u32 v113, v8, 10, v11")
    a(f"v_add_u32 v113, {L_RED}, v113")
    a("s_mul_i32 s60, s58, 3")
    a("v_add_u32 v11, s60, v8")
    a("v_lshl_add_u32 v11, v11, 3, v9")
    a("v_lshlrev_b32 v11, 6, v11")
    a("s_lshl_b32 s60, s59, 3")
    a("v_add_u32 v11, s60, v11")
    a("v_add_u32 v11, v11, v10")
    a("v_lshlrev_b32 v114, 3, v11")
    a("v_subrev_u32 v11, 1, v8")
    a("v_lshl_add_u32 v11, v11, 3, v9")
    a("v_lshlrev_b32 v11, 13, v11")
    a("s_lshl_b32 s60, s58, 8")
    a("s_lshl_b32 s61, s59, 5")
    a("s_add_u32 s60, s60, s61")
    a("v_add_u32 v11, s60, v11")
    a("v_lshl_add_u32 v115, v10, 2, v11")
    a("v_lshrrev_b32 v8, 5, v1")
    a("v_bfe_u32 v9, v1, 1, 4")
    a("v_and_b32 v10, 1, v1")
    for q in range(4):
        a(f"v_add_u32 v11, {2*q}, v8")
        a("v_xor_b32 v12, v9, v11")
        a("v_lshlrev_b32 v12, 4, v12")
        a("v_lshl_add_u32 v12, v11, 8, v12")
        a("v_lshl_add_u32 v12, v10, 3, v12")
        a(f"v_add_u32 v{100+q}, s21, v12")
    a("s_mov_b32 s60, 24576")
    a("v_mul_lo_u32 v8, v4, s60")
    a("v_xor_b32 v9, v3, v4")
    a("v_lshl_add_u32 v104, v9, 4, v8")
    for q in range(1, 4):
        a(f"v_xor_b32 v{104+q}, {q<<6}, v104")
    for ks in range(4):
        a(f"v_add_u32 v8, {4*ks}, v4")
        a("v_xor_b32 v8, v8, v3")
        a("v_lshlrev_b32 v8, 4, v8")
        a("v_lshl_add_u32 v8, v3, 8, v8")
        a(f"v_add_u32 v{116+ks}, s21, v8")
    a("v_and_b32 v9, 7, v1")
    for ks in range(4):
        a(f"v_add_u32 v8, {4*ks}, v4")
        a("v_xor_b32 v8, v8, v9")
        a("v_lshlrev_b32 v8, 4, v8")
        a("v_lshl_add_u32 v8, v9, 8, v8")
        a(f"v_add_u32 v{120+ks}, s21, v8")
    a("v_bfe_u32 v8, v1, 2, 2")
    a("v_lshl_add_u32 v8, v4, 2, v8")
    a("v_bfe_u32 v9, v1, 1, 1")
    a("v_xor_b32 v9, v9, v8")
    a("v_lshlrev_b32 v9, 4, v9")
    a("v_lshl_add_u32 v9, v8, 8, v9")
    a("v_and_b32 v10, 1, v1")
    a("v_lshl_add_u32 v9, v10, 3, v9")
    a("v_add_u32 v108, s21, v9")
    a("v_lshlrev_b32 v97, 11, v2")
    a("v_lshl_add_u32 v97, v1, 4, v97")
    a(f"v_add_u32 v97, {L_RED}, v97")
    a("v_lshrrev_b32 v8, 5, v0")
    a("v_bfe_u32 v9, v0, 4, 1")
    a("v_bfe_u32 v10, v0, 2, 2")
    a("v_and_b32 v11, 3, v0")
    a("v_lshl_add_u32 v10, v10, 4, v8")
    a("v_lshlrev_b32 v10, 4, v10")
    a("v_lshl_add_u32 v10, v9, 10, v10")
    a("v_lshl_add_u32 v10, v11, 2, v10")
    a(f"v_add_u32 v98, {L_RED}, v10")
    a("s_lshl_b32 s60, s25, 11")
    a("v_lshl_add_u32 v99, v0, 3, s60")
    a("s_lshl_b32 s60, s23, 11")
    a("v_lshl_add_u32 v96, v0, 3, s60")
    a("v_lshrrev_b32 v8, 5, v0")
    a("v_lshlrev_b32 v8, 9, v8")
    a("v_bfe_u32 v9, v0, 1, 4")
    a("v_add_u32 v8, v8, v9")
    a("s_lshl_b32 s60, s24, 12")
    a("s_lshl_b32 s61, s23, 4")
    a("s_add_u32 s60, s60, s61")
    a("v_add_u32 v8, s60, v8")
    a("v_lshlrev_b32 v95, 3, v8")
    a("s_mov_b32 s62, 0")
    def dma_kv():
        a(f"s_mul_i32 s3, s62, {32*24576}")
        a("s_lshl_b32 s60, s22, 8")
        a("s_add_u32 s3, s3, s60")
        for t in range(2):
            for q in range(8):
                a(f"s_add_u32 s60, s21, {(WV_K if t == 0 else WV_V) + 2048 + q*1024}")
                a("s_mov_b32 m0, s60")
                a(f"s_add_u32 s61, s3, {(t+1)*8192 + q*4*24576}")
                a(f"buffer_load_dwordx4 v{104 + ((q+2)&3)}, s[12:15], s61 offen lds")
    dma_kv()
    for i in range(12):
        a(f"s_mov_b32 s{70+i}, 0")
    a("s_waitcnt vmcnt(0) lgkmcnt(0)")
    a("s_barrier")
    stamp(-1)
    a.label(f".{name}_step")
    a(f"s_add_u32 s63, s62, {1 + 64*layer}")
    a("v_mov_b32 v125, s63")
    a("s_and_b32 s64, s62, 1")
    a(f"s_mul_i32 s65, s64, {B1_SZ}")
    a(f"s_mul_i32 s66, s64, {BX_SZ}")
    a(f"s_add_u32 s66, s66, {BX_OFF}")
    a(f"s_mul_i32 s67, s64, {BM_SZ}")
    a(f"s_add_u32 s67, s67, {BM_OFF}")
    for ks in range(8):
        a(f"ds_read_b128 v[{16+4*ks}:{19+4*ks}], v111 offset:{L_MEM + ks*64}")
    for t in range(3):
        for r in range(4):
            a(f"v_mov_b32 v{48+4*t+r}, 0")
    for ks in range(8):
        a(f"s_waitcnt lgkmcnt({7-ks})")
        for t in range(3):
            w = 128 + (t * 8 + ks) * 4
            a(f"v_mfma_f32_16x16x32_bf16 v[{48+4*t}:{51+4*t}], v[{w}:{w+3}], v[{16+4*ks}:{19+4*ks}], v[{48+4*t}:{51+4*t}]")
    a("s_nop 7")
    a("s_nop 1")
    for t in range(3):
        a(f"ds_write_b128 v112, v[{48+4*t}:{51+4*t}] offset:{t*1024}")
    a("s_waitcnt lgkmcnt(0)")
    a("s_barrier")
    stamp(0)
    a("v_cmp_gt_u32 vcc, 192, v0")
    a("s_and_saveexec_b64 s[42:43], vcc")
    lsk = a.new("sk")
    a(f"s_cbranch_execz {lsk}")
    for w in range(4):
        a(f"ds_read_b64 v[{16+2*w}:{17+2*w}], v113 offset:{w*3072}")
    a("s_waitcnt lgkmcnt(0)")
    a("v_add_f32 v16, v16, v18")
    a("v_add_f32 v17, v17, v19")
    a("v_add_f32 v20, v20, v22")
    a("v_add_f32 v21, v21, v23")
    a("v_add_f32 v16, v16, v20")
    a("v_add_f32 v17, v17, v21")
    a("v_cvt_pk_bf16_f32 v16, v16, v17")
    a("v_mov_b32 v17, v125")
    local_store("buffer_store_dwordx2 v[16:17], v114, s[8:11], s65 offen")
    a("v_cmp_le_u32 vcc, 64, v0")
    a("s_and_b64 exec, exec, vcc")
    a("s_mul_i32 s3, s62, 131072")
    a("buffer_store_dword v16, v115, s[16:19], s3 offen")
    a.label(lsk)
    a("s_mov_b64 exec, s[42:43]")
    stamp(1)
    a("s_mul_i32 s31, s22, 12288")
    a("s_add_u32 s31, s31, s65")
    a("s_add_u32 s32, s31, 4096")
    a("s_add_u32 s33, s31, 8192")
    loads = [f"buffer_load_dwordx4 v[{16+4*i}:{19+4*i}], v109, s[8:11], s{31+(i>>2)} offen offset:{(i&3)*1024} sc1" for i in range(12)]
    tags = [16 + 4 * i + q for i in range(12) for q in (1, 3)]
    poll(a, loads, tags, 125)
    for i in range(12):
        t = i >> 2
        base = (WV_Q, WV_K, WV_V)[t]
        a(f"v_mov_b32 v{17+4*i}, v{18+4*i}")
        a(f"ds_write_b64 v{100+(i&3)}, v[{16+4*i}:{17+4*i}] offset:{base}")
    a("s_waitcnt lgkmcnt(0)")
    stamp(2)
    for ks in range(4):
        a(f"ds_read_b128 v[{16+4*ks}:{19+4*ks}], v{120+ks} offset:{WV_Q}")
    for T in range(3):
        for ks in range(4):
            a(f"ds_read_b128 v[{44+16*T+4*ks}:{47+16*T+4*ks}], v{116+ks} offset:{WV_K + T*4096}")
    for T in range(3):
        for r in range(4):
            a(f"v_mov_b32 v{32+4*T+r}, 0")
    a("s_waitcnt lgkmcnt(0)")
    for ks in range(4):
        for T in range(3):
            k = 44 + 16 * T + 4 * ks
            a(f"v_mfma_f32_16x16x32_bf16 v[{32+4*T}:{35+4*T}], v[{k}:{k+3}], v[{16+4*ks}:{19+4*ks}], v[{32+4*T}:{35+4*T}]")
    a("s_nop 7")
    a("s_nop 1")
    stamp(8)
    for E in range(8):
        a(f"v_xor_b32 v24, {E<<5}, v108")
        for T in range(3):
            a(f"ds_read_b64_tr_b16 v[{44+6*E+2*T}:{45+6*E+2*T}], v24 offset:{WV_V + T*4096}")
    a("v_cmp_le_u32 vcc, 2, v4")
    a("v_mov_b32 v30, 0xff800000")
    a("s_nop 0")
    for r in range(4):
        a(f"v_cndmask_b32 v{40+r}, v{40+r}, v30, vcc")
    a("v_max_f32 v30, v32, v33")
    for i in range(2, 12):
        a(f"v_max_f32 v30, v30, v{32+i}")
    xlane_reduce(a, "v_max_f32", 30, 31)
    sc = (128 ** -0.5) * 1.4426950408889634
    a(f"v_mul_f32 v31, {f2h(-sc)}, v30")
    a(f"s_mov_b32 s3, {f2h(sc)}")
    for i in range(12):
        a(f"v_fma_f32 v{32+i}, v{32+i}, s3, v31")
        a(f"v_exp_f32 v{32+i}, v{32+i}")
    a("s_nop 0")
    a("v_add_f32 v30, v32, v33")
    for i in range(2, 12):
        a(f"v_add_f32 v30, v30, v{32+i}")
    xlane_reduce(a, "v_add_f32", 30, 31)
    a("v_rcp_f32 v30, v30")
    a("s_nop 0")
    for i in range(12):
        a(f"v_mul_f32 v{32+i}, v{32+i}, v30")
    for T in range(3):
        a(f"v_cvt_pk_bf16_f32 v{16+2*T}, v{32+4*T}, v{33+4*T}")
        a(f"v_cvt_pk_bf16_f32 v{17+2*T}, v{34+4*T}, v{35+4*T}")
    a("s_waitcnt lgkmcnt(0)")
    OBX = 0
    OB = 64 + 28
    for half in range(2):
        for e4 in range(4):
            E = half * 4 + e4
            o = 24 + 4 * e4
            a(f"v_mfma_f32_16x16x32_bf16 v[{o}:{o+3}], v[{44+6*E}:{47+6*E}], v[16:19], 0")
        for e4 in range(4):
            E = half * 4 + e4
            o = 24 + 4 * e4
            a(f"v_mfma_f32_16x16x16_bf16 v[{o}:{o+3}], v[{48+6*E}:{49+6*E}], v[20:21], v[{o}:{o+3}]")
        a("s_nop 7")
        a("s_nop 1")
        for e4 in range(4):
            E = half * 4 + e4
            o = 24 + 4 * e4
            a(f"v_cvt_pk_bf16_f32 v{44+6*E}, v{o}, v{o+1}")
            a(f"v_cvt_pk_bf16_f32 v{45+6*E}, v{o+2}, v{o+3}")
    for E in range(8):
        a(f"v_mov_b32 v{24+2*E}, v{44+6*E}")
        a(f"v_mov_b32 v{25+2*E}, v{45+6*E}")
    a("s_nop 1")
    for ks in range(4):
        for tile in range(2):
            w = 224 + (tile * 4 + ks) * 4
            d = 16 + 4 * tile
            src = "0" if ks == 0 else f"v[{d}:{d+3}]"
            a(f"v_mfma_f32_16x16x32_bf16 v[{d}:{d+3}], v[{w}:{w+3}], v[{24+4*ks}:{27+4*ks}], {src}")
    a("s_nop 7")
    a("s_nop 1")
    for tile in range(2):
        a(f"ds_write_b128 v97, v[{16+4*tile}:{19+4*tile}] offset:{tile*1024}")
    a("s_waitcnt lgkmcnt(0)")
    stamp(10)
    a("s_barrier")
    stamp(11)
    for w in range(4):
        a(f"ds_read_b32 v{16+w}, v98 offset:{w*2048}")
    a("s_waitcnt lgkmcnt(0)")
    a("v_add_f32 v16, v16, v17")
    a("v_add_f32 v18, v18, v19")
    a("v_add_f32 v16, v16, v18")
    a("v_mov_b32 v17, v125")
    a("buffer_store_dwordx2 v[16:17], v99, s[8:11], s66 offen sc1")
    a("s_cmp_eq_u32 s62, 63")
    lnp = a.new("np")
    a(f"s_cbranch_scc1 {lnp}")
    a("s_add_u32 s62, s62, 1")
    dma_kv()
    a("s_sub_u32 s62, s62, 1")
    a.label(lnp)
    stamp(3)
    for xs in range(8):
        a(f"s_add_u32 s{31+xs}, s66, {xs*65536}")
    loads = [f"buffer_load_dwordx2 v[{16+2*i}:{17+2*i}], v96, s[8:11], s{31+i} offen sc1" for i in range(8)]
    poll(a, loads, [17 + 2 * i for i in range(8)], 125)
    stamp(4)
    a("v_add_f32 v16, v16, v18")
    a("v_add_f32 v20, v20, v22")
    a("v_add_f32 v24, v24, v26")
    a("v_add_f32 v28, v28, v30")
    a("v_add_f32 v16, v16, v20")
    a("v_add_f32 v24, v24, v28")
    a("v_add_f32 v16, v16, v24")
    a("ds_swizzle_b32 v17, v16 offset:0x041f")
    a("s_waitcnt lgkmcnt(0)")
    a("v_cvt_pk_bf16_f32 v16, v16, v17")
    a("v_mov_b32 v17, v125")
    a("v_and_b32 v18, 1, v0")
    a("v_cmp_eq_u32 vcc, 0, v18")
    a("s_and_saveexec_b64 s[42:43], vcc")
    local_store("buffer_store_dwordx2 v[16:17], v95, s[8:11], s67 offen")
    a("s_mov_b64 exec, s[42:43]")
    stamp(5)
    a("s_cmp_eq_u32 s62, 63")
    a(f"s_cbranch_scc1 .{name}_fin")
    a("s_lshl_b32 s60, s24, 15")
    a("s_add_u32 s60, s60, s67")
    for i in range(8):
        a(f"s_add_u32 s{31+i}, s60, {i*4096}")
    loads = [f"buffer_load_dwordx4 v[{16+4*i}:{19+4*i}], v110, s[8:11], s{31+i} offen sc1" for i in range(8)]
    poll(a, loads, [16 + 4 * i + q for i in range(8) for q in (1, 3)], 125)
    stamp(6)
    for i in range(8):
        a(f"v_mov_b32 v{17+4*i}, v{18+4*i}")
        a(f"ds_write_b64 v124, v[{16+4*i}:{17+4*i}] offset:{L_MEM + i*MEM_LD}")
    a("s_waitcnt lgkmcnt(0)")
    a("s_barrier")
    stamp(7)
    a("s_add_u32 s62, s62, 1")
    a(f"s_branch .{name}_step")
    a.label(f".{name}_fin")
    if prof:
        srd(a, 8, "s26", "s27", 256)
        a("s_cmp_eq_u32 s2, 5")
        a(f"s_cbranch_scc0 .{name}_done")
        a("v_cmp_eq_u32 vcc, 0, v0")
        a("s_and_saveexec_b64 s[42:43], vcc")
        a("v_mov_b32 v1, 64")
        for i in range(12):
            a(f"v_mov_b32 v2, s{70+i}")
            a(f"buffer_store_dword v2, v1, s[8:11], 0 offen offset:{i*4}")
            a("s_nop 1")
    a.label(f".{name}_done")
    kernel_end(a, name, 256, 96)
    return L_END

def gen_zero(a, name, WS):
    n = HOP_TOTAL
    kernel_begin(a, name)
    nwg = (n + 4095) // 4096
    a(f"s_cmp_ge_u32 s2, {nwg}")
    a(f"s_cbranch_scc1 .{name}_done")
    a(f"s_load_dwordx2 s[4:5], s[0:1], {KA['ws']}")
    a("s_waitcnt lgkmcnt(0)")
    a(f"s_add_u32 s4, s4, {WS['HOP']:#x}")
    a("s_addc_u32 s5, s5, 0")
    srd(a, 8, "s4", "s5", n)
    a("s_lshl_b32 s3, s2, 12")
    a("v_lshlrev_b32 v1, 4, v0")
    a("v_add_u32 v1, s3, v1")
    for i in range(4):
        a(f"v_mov_b32 v{4+i}, 0")
    a("buffer_store_dwordx4 v[4:7], v1, s[8:11], 0 offen")
    a.label(f".{name}_done")
    kernel_end(a, name, 16, 24)
    return nwg
```

```python
from asmlib import *

def wave_reduce_add(a, v, tmp):
    for m in (1, 2, 4, 8, 16):
        a(f"ds_swizzle_b32 v{tmp}, v{v} offset:{(m << 10) | 0x1f:#x}")
        a("s_waitcnt lgkmcnt(0)")
        a(f"v_add_f32 v{v}, v{v}, v{tmp}")
    a(f"v_mov_b32 v{tmp}, v{v}")
    a("s_nop 1")
    a(f"v_permlane32_swap_b32 v{v}, v{tmp}")
    a("s_nop 1")
    a(f"v_add_f32 v{v}, v{v}, v{tmp}")

def gen_ln(a, name, src_arg, src_off, dst_off, double, zero=None):
    kernel_begin(a, name)
    if zero is not None:
        zoff, zn = zero
        nwg = (zn + 4095) // 4096
        lz = a.new("z")
        a("s_cmp_lt_u32 s2, 512")
        a(f"s_cbranch_scc1 {lz}")
        a(f"s_cmp_ge_u32 s2, {512 + nwg}")
        a(f"s_cbranch_scc1 .{name}_done")
        a(f"s_load_dwordx2 s[4:5], s[0:1], {KA['ws']}")
        a("s_waitcnt lgkmcnt(0)")
        a(f"s_add_u32 s4, s4, {zoff:#x}")
        a("s_addc_u32 s5, s5, 0")
        srd(a, 8, "s4", "s5", zn)
        a("s_sub_u32 s3, s2, 512")
        a("s_lshl_b32 s3, s3, 12")
        a("v_lshlrev_b32 v1, 4, v0")
        a("v_add_u32 v1, s3, v1")
        for i in range(4):
            a(f"v_mov_b32 v{4+i}, 0")
        a("buffer_store_dwordx4 v[4:7], v1, s[8:11], 0 offen")
        a("s_endpgm")
        a.label(lz)
    else:
        a("s_cmp_ge_u32 s2, 512")
        a(f"s_cbranch_scc1 .{name}_done")
    a(f"s_load_dwordx2 s[4:5], s[0:1], {KA[src_arg]}")
    a(f"s_load_dwordx2 s[6:7], s[0:1], {KA['ws']}")
    a("s_waitcnt lgkmcnt(0)")
    if src_off:
        a(f"s_add_u32 s4, s4, {src_off:#x}")
        a("s_addc_u32 s5, s5, 0")
    a(f"s_add_u32 s6, s6, {dst_off:#x}")
    a("s_addc_u32 s7, s7, 0")
    srd(a, 8, "s4", "s5", 2048 * 2048)
    srd(a, 12, "s6", "s7", 2048 * 2048)
    a("v_lshrrev_b32 v1, 6, v0")
    a("v_and_b32 v2, 63, v0")
    a("s_lshl_b32 s3, s2, 2")
    a("v_add_u32 v1, s3, v1")
    a("v_lshlrev_b32 v1, 11, v1")
    a("v_lshlrev_b32 v2, 4, v2")
    a("v_add_u32 v1, v1, v2")
    a("buffer_load_dwordx4 v[4:7], v1, s[8:11], 0 offen")
    a("buffer_load_dwordx4 v[8:11], v1, s[8:11], 0 offen offset:1024")
    a("s_waitcnt vmcnt(0)")
    for i in range(8):
        a(f"v_lshlrev_b32 v{16+2*i}, 16, v{4+i}")
        a(f"v_and_b32 v{17+2*i}, 0xffff0000, v{4+i}")
    for it in range(2 if double else 1):
        a("v_add_f32 v32, v16, v17")
        for i in range(2, 16):
            a(f"v_add_f32 v32, v32, v{16+i}")
        wave_reduce_add(a, 32, 33)
        a("v_mul_f32 v32, 0x3a800000, v32")
        for i in range(16):
            a(f"v_sub_f32 v{16+i}, v{16+i}, v32")
        a("v_mul_f32 v34, v16, v16")
        for i in range(1, 16):
            a(f"v_fmac_f32 v34, v{16+i}, v{16+i}")
        wave_reduce_add(a, 34, 33)
        a("v_mov_b32 v35, 0x3727c5ac")
        a("v_fmac_f32 v35, 0x3a800000, v34")
        a("v_rsq_f32 v35, v35")
        a("s_nop 0")
        for i in range(16):
            a(f"v_mul_f32 v{16+i}, v{16+i}, v35")
        for i in range(8):
            a(f"v_cvt_pk_bf16_f32 v{4+i}, v{16+2*i}, v{17+2*i}")
        if double and it == 0:
            for i in range(8):
                a(f"v_lshlrev_b32 v{16+2*i}, 16, v{4+i}")
                a(f"v_and_b32 v{17+2*i}, 0xffff0000, v{4+i}")
    a("buffer_store_dwordx4 v[4:7], v1, s[12:15], 0 offen")
    a("buffer_store_dwordx4 v[8:11], v1, s[12:15], 0 offen offset:1024")
    a.label(f".{name}_done")
    kernel_end(a, name, 40, 24)
```

```python
import sys, struct
from asmlib import *
from k_ln import gen_ln
from k_gemm import gen_gemm
from k_chain2 import gen_chain, gen_zero, HOP_TOTAL
from k_attn import gen_attn

MB = 1 << 20
WS = dict(Y=0, X1=4*MB, X2=8*MB, QKV=16*MB, O=64*MB, H=80*MB, KVM=96*MB, HOP=112*MB)

def main(out_path, prof=False):
    a = Asm()
    launches = []
    gen_ln(a, "ln_a_kernel", 'A_x', 0, WS['Y'], False, zero=(WS['HOP'], HOP_TOTAL))
    gen_ln(a, "ln_b_kernel", 'ws', WS['X1'], WS['Y'], True)
    gen_ln(a, "ln_c_kernel", 'ws', WS['X2'], WS['Y'], False)
    nq, ldsq = gen_gemm(a, "gemm_qkv_kernel", BM=256, BN=128, M=2048, N=12288, K=1024, A_off=WS['Y'], lda=2048,
             W_args=['Wq', 'Wk', 'Wv'], ldw=8192, out_arg='ws', out_off=WS['QKV'], ldc=24576, epi='store')
    n0, lds0 = gen_gemm(a, "gemm_wo0_kernel", BM=128, BN=64, M=2048, N=1024, K=4096, A_off=WS['O'], lda=8192,
             W_args=['Wo'], ldw=2048, out_arg='ws', out_off=WS['X1'], ldc=2048, epi='res', res_arg='A_x')
    gen_gemm(a, "gemm_wo1_kernel", BM=128, BN=64, M=2048, N=1024, K=4096, A_off=WS['O'], lda=8192,
             W_args=['Wo'], ldw=2048, out_arg='ws', out_off=WS['X1'], ldc=2048, epi='res', res_arg='ws', res_off=WS['X2'])
    n1, lds1 = gen_gemm(a, "gemm_w1_kernel", BM=256, BN=128, M=2048, N=3584, K=1024, A_off=WS['Y'], lda=2048,
             W_args=['w1'], ldw=7168, out_arg='ws', out_off=WS['H'], ldc=7168, epi='gelu', bias_arg='b1')
    n2, lds2 = gen_gemm(a, "gemm_w2a_kernel", BM=128, BN=64, M=2048, N=1024, K=3584, A_off=WS['H'], lda=7168,
             W_args=['w2'], ldw=2048, out_arg='ws', out_off=WS['X2'], ldc=2048, epi='biasres', res_arg='ws', res_off=WS['X1'], bias_arg='b2')
    gen_gemm(a, "gemm_w2b_kernel", BM=128, BN=64, M=2048, N=1024, K=3584, A_off=WS['H'], lda=7168,
             W_args=['w2'], ldw=2048, out_arg='out', out_off=0, ldc=2048, epi='biasres', res_arg='ws', res_off=WS['X1'], bias_arg='b2')
    ldsc = gen_chain(a, "chain0_kernel", 0, WS, prof)
    gen_chain(a, "chain1_kernel", 1, WS)
    nz = (HOP_TOTAL + 4095) // 4096
    ldsa = gen_attn(a, "attn_kernel", WS)
    launches = [("ln_a_kernel", 512 + nz, 256, 0), ("gemm_qkv_kernel", nq, 256, ldsq), ("chain0_kernel", 256, 256, ldsc), ("attn_kernel", 512, 256, ldsa),
        ("gemm_wo0_kernel", n0, 256, lds0), ("ln_b_kernel", 512, 256, 0), ("gemm_w1_kernel", n1, 256, lds1), ("gemm_w2a_kernel", n2, 256, lds2),
        ("ln_c_kernel", 512, 256, 0), ("gemm_qkv_kernel", nq, 256, ldsq), ("chain1_kernel", 256, 256, ldsc), ("attn_kernel", 512, 256, ldsa),
        ("gemm_wo1_kernel", n0, 256, lds0), ("ln_b_kernel", 512, 256, 0), ("gemm_w1_kernel", n1, 256, lds1), ("gemm_w2b_kernel", n2, 256, lds2)]
    hdr = open('interleave_layers__memory_aug_recurrent_mem_tr__mixer_channel_mlp__prompt.s.ref').read().split("; @launch")[0]
    s = hdr
    for k, g, b, l in launches:
        s += f"; @launch kernel={k} grid=({g},1,1) block=({b},1,1) lds={l}\n"
    s += '.amdgcn_target "amdgcn-amd-amdhsa--gfx950"\n'
    s += a.text()
    open(out_path, 'w').write(s)

if __name__ == "__main__":
    main(sys.argv[1] if len(sys.argv) > 1 else 'interleave_layers__memory_aug_recurrent_mem_tr__mixer_channel_mlp__prompt.s', len(sys.argv) > 2)
```

```python
from asmlib import *

def gen_gemm(a, name, *, BM, BN, M, N, K, A_off, lda, W_args, ldw, out_arg, out_off, ldc, epi,
             res_arg=None, res_off=0, bias_arg=None):
    MT = BM // 64
    NT = BN // 64
    mtiles = M // BM
    ntiles = N // BN
    ntasks = mtiles * ntiles
    A_BYTES = BM * 128
    W_BYTES = 64 * BN * 2
    STAGE = A_BYTES + W_BYTES
    NST = 3
    A_INSTR = BM // 8 // 4
    W_ROWS_PER_INSTR = 1024 // (BN * 2)
    W_INSTR = 64 // W_ROWS_PER_INSTR // 4
    NLOAD = A_INSTR + W_INSTR
    KB = K // 64
    nper = N // len(W_args)
    ACC = 128
    kernel_begin(a, name)
    a(f"s_cmp_ge_u32 s2, {ntasks}")
    a(f"s_cbranch_scc1 .{name}_done")
    a(f"s_load_dwordx2 s[6:7], s[0:1], {KA['ws']}")
    for i, w in enumerate(W_args):
        a(f"s_load_dwordx2 s[{28+2*i}:{29+2*i}], s[0:1], {KA[w]}")
    if out_arg != 'ws':
        a(f"s_load_dwordx2 s[34:35], s[0:1], {KA[out_arg]}")
    if res_arg is not None and res_arg != 'ws':
        a(f"s_load_dwordx2 s[36:37], s[0:1], {KA[res_arg]}")
    if bias_arg is not None:
        a(f"s_load_dwordx2 s[38:39], s[0:1], {KA[bias_arg]}")
    lm = mtiles.bit_length() - 1
    assert (1 << lm) == mtiles
    a(f"s_and_b32 s40, s2, {mtiles-1}")
    a(f"s_lshr_b32 s41, s2, {lm}")
    a("s_waitcnt lgkmcnt(0)")
    a(f"s_add_u32 s4, s6, {A_off:#x}")
    a("s_addc_u32 s5, s7, 0")
    srd(a, 8, "s4", "s5", M * lda)
    a(f"s_mul_i32 s42, s41, {BN}")
    if len(W_args) > 1:
        a("s_mov_b32 s4, s28")
        a("s_mov_b32 s5, s29")
        for i in range(1, len(W_args)):
            a(f"s_cmp_ge_u32 s42, {i*nper}")
            a(f"s_cselect_b32 s4, s{28+2*i}, s4")
            a(f"s_cselect_b32 s5, s{29+2*i}, s5")
        a(f"s_and_b32 s43, s42, {nper-1}")
    else:
        a("s_mov_b32 s4, s28")
        a("s_mov_b32 s5, s29")
        a("s_mov_b32 s43, s42")
    srd(a, 12, "s4", "s5", K * ldw)
    a(f"s_mul_i32 s44, s40, {BM*lda}")
    a("s_lshl_b32 s45, s43, 1")
    a("v_and_b32 v1, 63, v0")
    a("v_lshrrev_b32 v2, 6, v0")
    a("s_nop 0")
    a("v_readfirstlane_b32 s46, v2")
    a("v_lshrrev_b32 v3, 3, v1")
    a("v_and_b32 v4, 7, v1")
    a("v_xor_b32 v4, v4, v3")
    a("v_lshlrev_b32 v4, 4, v4")
    a(f"s_mov_b32 s47, {lda}")
    a("v_mul_lo_u32 v3, v3, s47")
    a("v_add_u32 v10, v3, v4")
    if BN == 128:
        a("v_lshrrev_b32 v3, 4, v1")
        a("v_and_b32 v4, 15, v1")
        a("v_lshlrev_b32 v5, 2, v3")
        a("v_xor_b32 v4, v4, v5")
    else:
        a("v_lshrrev_b32 v3, 3, v1")
        a("v_and_b32 v4, 7, v1")
        a("v_lshrrev_b32 v5, 1, v3")
        a("v_and_b32 v5, 1, v5")
        a("v_lshlrev_b32 v5, 2, v5")
        a("v_xor_b32 v4, v4, v5")
    a("v_lshlrev_b32 v4, 4, v4")
    a(f"s_mov_b32 s47, {ldw}")
    a("v_mul_lo_u32 v3, v3, s47")
    a("v_add_u32 v11, v3, v4")
    a(f"s_mul_i32 s48, s46, {A_INSTR*8*lda}")
    a("s_add_u32 s44, s44, s48")
    a(f"s_mul_i32 s48, s46, {W_INSTR*W_ROWS_PER_INSTR*ldw}")
    a("s_add_u32 s45, s45, s48")
    a(f"s_mul_i32 s49, s46, {A_INSTR*1024}")
    a(f"s_mul_i32 s50, s46, {W_INSTR*1024}")
    a(f"s_add_u32 s50, s50, {A_BYTES}")
    a("v_lshrrev_b32 v3, 1, v2")
    a("v_and_b32 v4, 1, v2")
    a("v_and_b32 v5, 31, v1")
    a("v_lshrrev_b32 v6, 5, v1")
    a(f"v_mul_u32_u24 v7, {BM//2}, v3")
    a("v_add_u32 v7, v7, v5")
    a("v_lshlrev_b32 v7, 7, v7")
    a("v_and_b32 v8, 7, v1")
    a("v_xor_b32 v8, v8, v6")
    a("v_lshlrev_b32 v8, 4, v8")
    a("v_add_u32 v12, v7, v8")
    for t in range(1, 4):
        a(f"v_xor_b32 v{12+t}, {t<<5}, v12")
    a("v_lshrrev_b32 v7, 4, v1")
    a("v_and_b32 v7, 1, v7")
    a("v_lshrrev_b32 v8, 2, v1")
    a("v_and_b32 v8, 3, v8")
    a("v_and_b32 v9, 3, v1")
    a(f"v_mul_u32_u24 v16, {BN//16}, v4")
    a("v_lshl_add_u32 v16, v7, 1, v16")
    a("v_lshrrev_b32 v17, 1, v9")
    a("v_add_u32 v16, v16, v17")
    if BN == 128:
        a("v_lshlrev_b32 v17, 2, v8")
    else:
        a("v_lshrrev_b32 v17, 1, v8")
        a("v_lshlrev_b32 v17, 2, v17")
    a("v_lshl_add_u32 v18, v6, 3, v8")
    a(f"v_mul_u32_u24 v18, {BN*2}, v18")
    a("v_and_b32 v19, 1, v9")
    a("v_lshl_add_u32 v18, v19, 3, v18")
    a(f"v_add_u32 v18, {A_BYTES}, v18")
    for nt in range(NT):
        a(f"v_add_u32 v19, {nt*4}, v16")
        a("v_xor_b32 v19, v19, v17")
        a(f"v_lshl_add_u32 v{20+nt}, v19, 4, v18")
    for i in range(MT * NT * 16):
        a(f"v_mov_b32 v{ACC+i}, 0")
    def stage_instrs():
        groups = []
        for q in range(A_INSTR):
            g = ["s_add_u32 s52, s51, s49"]
            if q: g.append(f"s_add_u32 s52, s52, {q*1024}")
            g += ["s_mov_b32 m0, s52", f"s_add_u32 s53, s44, {q*8*lda}", "buffer_load_dwordx4 v10, s[8:11], s53 offen lds"]
            groups.append(g)
        for q in range(W_INSTR):
            g = ["s_add_u32 s52, s51, s50"]
            if q: g.append(f"s_add_u32 s52, s52, {q*1024}")
            g += ["s_mov_b32 m0, s52", f"s_add_u32 s53, s45, {q*W_ROWS_PER_INSTR*ldw}", "buffer_load_dwordx4 v11, s[12:15], s53 offen lds"]
            groups.append(g)
        tail = ["s_add_u32 s44, s44, 128", f"s_add_u32 s45, s45, {64*ldw}", f"s_add_u32 s51, s51, {STAGE}",
                f"s_cmp_eq_u32 s51, {NST*STAGE}", "s_cselect_b32 s51, 0, s51"]
        return groups, tail
    def issue_stage():
        groups, tail = stage_instrs()
        for g in groups:
            for i in g: a(i)
        for i in tail: a(i)
    a("s_mov_b32 s51, 0")
    issue_stage()
    issue_stage()
    a("s_mov_b32 s54, 0")
    a("s_mov_b32 s55, 0")
    a.label(f".{name}_loop")
    a(f"s_waitcnt vmcnt({NLOAD})")
    a("s_barrier")
    for t in range(4):
        a(f"v_add_u32 v{24+t}, s54, v{12+t}")
    for nt in range(NT):
        a(f"v_add_u32 v{28+nt}, s54, v{20+nt}")
    FA = [32, 56]
    FW = [48, 72]
    def reads(t):
        s_ = t & 1
        for mt in range(MT):
            a(f"ds_read_b128 v[{FA[s_]+4*mt}:{FA[s_]+4*mt+3}], v{24+t} offset:{mt*4096}")
        for nt in range(NT):
            a(f"ds_read_b64_tr_b16 v[{FW[s_]+4*nt}:{FW[s_]+4*nt+1}], v{28+nt} offset:{t*16*BN*2}")
            a(f"ds_read_b64_tr_b16 v[{FW[s_]+4*nt+2}:{FW[s_]+4*nt+3}], v{28+nt} offset:{(t*16+4)*BN*2}")
    NR = MT + 2 * NT
    groups, tail = stage_instrs()
    nm = 4 * MT * NT
    slots = {}
    for gi, g in enumerate(groups):
        pos = (gi * nm) // len(groups)
        slots.setdefault(pos, []).append(g)
    reads(0)
    mi = 0
    for t in range(4):
        if t < 3:
            reads(t + 1)
            a(f"s_waitcnt lgkmcnt({NR})")
        else:
            a("s_waitcnt lgkmcnt(0)")
        s_ = t & 1
        for mt in range(MT):
            for nt in range(NT):
                d = ACC + (mt * NT + nt) * 16
                a(f"v_mfma_f32_32x32x16_bf16 v[{d}:{d+15}], v[{FW[s_]+4*nt}:{FW[s_]+4*nt+3}], v[{FA[s_]+4*mt}:{FA[s_]+4*mt+3}], v[{d}:{d+15}]")
                for g in slots.get(mi, []):
                    for i in g: a(i)
                mi += 1
    for i in tail: a(i)
    a(f"s_add_u32 s54, s54, {STAGE}")
    a(f"s_cmp_eq_u32 s54, {NST*STAGE}")
    a("s_cselect_b32 s54, 0, s54")
    a("s_add_u32 s55, s55, 1")
    a(f"s_cmp_lt_u32 s55, {KB}")
    a(f"s_cbranch_scc1 .{name}_loop")
    a("s_waitcnt vmcnt(0)")
    a("s_nop 15")
    a("s_nop 15")
    if out_arg == 'ws':
        a(f"s_add_u32 s4, s6, {out_off:#x}")
        a("s_addc_u32 s5, s7, 0")
    else:
        a("s_mov_b32 s4, s34")
        a("s_mov_b32 s5, s35")
    srd(a, 16, "s4", "s5", M * ldc)
    if epi in ('res', 'biasres'):
        if res_arg == 'ws':
            a(f"s_add_u32 s4, s6, {res_off:#x}")
            a("s_addc_u32 s5, s7, 0")
        else:
            a("s_mov_b32 s4, s36")
            a("s_mov_b32 s5, s37")
        srd(a, 20, "s4", "s5", M * ldc)
    if epi in ('gelu', 'biasres'):
        srd(a, 24, "s38", "s39", N * 2)
    a(f"s_mul_i32 s4, s40, {BM}")
    a(f"v_mul_u32_u24 v7, {BM//2}, v3")
    a("v_add_u32 v7, v7, v5")
    a("v_add_u32 v7, s4, v7")
    a(f"s_mov_b32 s47, {ldc}")
    a("v_mul_lo_u32 v7, v7, s47")
    a(f"v_mul_u32_u24 v8, {BN//2}, v4")
    a("v_lshl_add_u32 v8, v6, 2, v8")
    a("v_add_u32 v8, s42, v8")
    a("v_lshlrev_b32 v8, 1, v8")
    a("v_add_u32 v7, v7, v8")
    for nt in range(NT):
        if epi in ('gelu', 'biasres'):
            for g in range(4):
                a(f"buffer_load_dwordx2 v[{56+2*g}:{57+2*g}], v8, s[24:27], 0 offen offset:{nt*64+g*16}")
        for mt in range(MT):
            d = ACC + (mt * NT + nt) * 16
            a(f"s_mov_b32 s4, {mt*32*ldc}")
            if epi in ('res', 'biasres'):
                for g in range(4):
                    a(f"buffer_load_dwordx2 v[{40+2*g}:{41+2*g}], v7, s[20:23], s4 offen offset:{nt*64+g*16}")
            a("s_waitcnt vmcnt(0)")
            for g in range(4):
                r0 = d + 4 * g
                if epi == 'store':
                    a(f"v_cvt_pk_bf16_f32 v32, v{r0}, v{r0+1}")
                    a(f"v_cvt_pk_bf16_f32 v33, v{r0+2}, v{r0+3}")
                else:
                    a(f"v_cvt_pk_bf16_f32 v32, v{r0}, v{r0+1}")
                    a(f"v_cvt_pk_bf16_f32 v33, v{r0+2}, v{r0+3}")
                    a("v_lshlrev_b32 v34, 16, v32")
                    a("v_and_b32 v35, 0xffff0000, v32")
                    a("v_lshlrev_b32 v36, 16, v33")
                    a("v_and_b32 v37, 0xffff0000, v33")
                    if epi in ('gelu', 'biasres'):
                        b = 56 + 2 * g
                        a(f"v_lshlrev_b32 v38, 16, v{b}")
                        a("v_add_f32 v34, v34, v38")
                        a(f"v_and_b32 v38, 0xffff0000, v{b}")
                        a("v_add_f32 v35, v35, v38")
                        a(f"v_lshlrev_b32 v38, 16, v{b+1}")
                        a("v_add_f32 v36, v36, v38")
                        a(f"v_and_b32 v38, 0xffff0000, v{b+1}")
                        a("v_add_f32 v37, v37, v38")
                        a("v_cvt_pk_bf16_f32 v32, v34, v35")
                        a("v_cvt_pk_bf16_f32 v33, v36, v37")
                        a("v_lshlrev_b32 v34, 16, v32")
                        a("v_and_b32 v35, 0xffff0000, v32")
                        a("v_lshlrev_b32 v36, 16, v33")
                        a("v_and_b32 v37, 0xffff0000, v33")
                    if epi == 'gelu':
                        for u in (34, 35, 36, 37):
                            a(f"v_mul_f32 v38, v{u}, v{u}")
                            a(f"v_mul_f32 v38, v38, v{u}")
                            a(f"v_mov_b32 v39, v{u}")
                            a("v_fmac_f32 v39, 0x3d372713, v38")
                            a("v_mul_f32 v39, 0xc0135761, v39")
                            a("v_exp_f32 v39, v39")
                            a("s_nop 0")
                            a("v_add_f32 v39, 1.0, v39")
                            a("v_rcp_f32 v39, v39")
                            a("s_nop 0")
                            a(f"v_mul_f32 v{u}, v{u}, v39")
                    if epi in ('res', 'biasres'):
                        x = 40 + 2 * g
                        a(f"v_lshlrev_b32 v38, 16, v{x}")
                        a("v_add_f32 v34, v34, v38")
                        a(f"v_and_b32 v38, 0xffff0000, v{x}")
                        a("v_add_f32 v35, v35, v38")
                        a(f"v_lshlrev_b32 v38, 16, v{x+1}")
                        a("v_add_f32 v36, v36, v38")
                        a(f"v_and_b32 v38, 0xffff0000, v{x+1}")
                        a("v_add_f32 v37, v37, v38")
                    a("v_cvt_pk_bf16_f32 v32, v34, v35")
                    a("v_cvt_pk_bf16_f32 v33, v36, v37")
                a(f"buffer_store_dwordx2 v[32:33], v7, s[16:19], s4 offen offset:{nt*64+g*16}")
                a("s_nop 1")
    a.label(f".{name}_done")
    kernel_end(a, name, 256, 64)
    return ntasks, NST * STAGE
```
